```python
import torch

def _softmax(x, axis=-1):
    return torch.softmax(x, dim=axis)

def _gelu(x):
    return torch.nn.functional.gelu(x, approximate='tanh')

def _silu(x):
    return torch.nn.functional.silu(x)

def _sigmoid(x):
    return torch.sigmoid(x)

def _layernorm(x, axis=-1, eps=1e-05):
    m = x.mean(dim=axis, keepdim=True)
    v = x.var(dim=axis, keepdim=True, unbiased=False)
    return (x - m) / torch.sqrt(v + eps)

def _scatter_add(tgt, idx, src, axis=0):
    return tgt.clone().index_add_(axis, idx, src)

def _segment_sum(src, seg, n):
    out = torch.zeros((n,) + src.shape[1:], dtype=src.dtype)
    return out.index_add_(0, seg, src)

def _pad(x, pw):
    flat = tuple((v for pair in reversed(pw) for v in pair))
    return torch.nn.functional.pad(x, flat)
kernel_name = 'standalone__dit_block__diffusion'

def setup_inputs():

    _w = lambda a: (lambda t: t.to(torch.bfloat16) if t.is_floating_point() else t)(torch.as_tensor(a))
    B, N, D = (2, 1024, 768)
    F = 4 * D
    return {'x': _w((lambda *s: torch.randn(*s, dtype=torch.bfloat16) * 0.05)(B, N, D)), 'c': _w((lambda *s: torch.randn(*s, dtype=torch.bfloat16) * 0.2)(B, D)), 'wqkv': _w((lambda *s: torch.randn(*s, dtype=torch.bfloat16) * 0.05)(D, 3 * D)), 'wo': _w((lambda *s: torch.randn(*s, dtype=torch.bfloat16) * 0.05)(D, D)), 'w_mod': _w((lambda *s: torch.randn(*s, dtype=torch.bfloat16) * 0.2)(D, 6 * D)), 'w_fc1': _w((lambda *s: torch.randn(*s, dtype=torch.bfloat16) * 0.05)(D, F)), 'w_fc2': _w((lambda *s: torch.randn(*s, dtype=torch.bfloat16) * 0.05)(F, D))}

def reference(x, c, wqkv, wo, w_mod, w_fc1, w_fc2):
    B, N, D = x.shape
    H = 2
    Dh = D // H
    mod = (_silu(c) @ w_mod).reshape(B, 6, 1, D)
    shift_a, scale_a, gate_a, shift_m, scale_m, gate_m = [mod[:, i] for i in range(6)]
    h = _layernorm(x, axis=-1) * (1 + scale_a) + shift_a
    qkv = (h @ wqkv).reshape(B, N, 3, H, Dh)
    q, k, v = (qkv[:, :, 0].clone(), qkv[:, :, 1].clone(), qkv[:, :, 2].clone())
    attn = _softmax(torch.einsum('bqhd,bkhd->bhqk', q, k) * Dh ** (-0.5), axis=-1)
    a = torch.einsum('bhqk,bkhd->bqhd', attn, v).reshape(B, N, D) @ wo
    x = x + gate_a * a
    h2 = _layernorm(x, axis=-1) * (1 + scale_m) + shift_m
    m = _gelu(h2 @ w_fc1) @ w_fc2
    return x + gate_m * m
```

```python
import sys

WS_MOD = 0x0
WS_H   = 0x100000
WS_QKV = 0x400000
WS_S   = 0x1000000
WS_P   = 0x1800000
WS_AO  = 0x2000000
WS_X2  = 0x2400000
WS_H2  = 0x2800000
WS_G   = 0x2C00000

KA_X, KA_C, KA_WQKV, KA_WO, KA_WMOD, KA_FC1, KA_FC2, KA_OUT, KA_DBG, KA_WS = [8 * i for i in range(10)]


class K:
    def __init__(self, name):
        self.name = name
        self.lines = []
        self.vmax = 0
        self.lab = 0

    def __call__(self, s):
        self.lines.append("    " + s)

    def label(self, l):
        self.lines.append(l + ":")

    def newlab(self, p="L"):
        self.lab += 1
        return f"{p}_{self.name}_{self.lab}"


def kernel_text(k, nvgpr, nsgpr=100):
    nv = ((nvgpr + 7) // 8) * 8
    acc = ((nvgpr + 3) // 4) * 4
    out = []
    out.append(".text")
    out.append(f".globl {k.name}")
    out.append(".p2align 8")
    out.append(f".type {k.name},@function")
    out.append(f"{k.name}:")
    out += k.lines
    out.append("    s_endpgm")
    out.append('.section .rodata,"a"')
    out.append(".p2align 6")
    out.append(f".amdhsa_kernel {k.name}")
    out.append(f"  .amdhsa_next_free_vgpr {nv}")
    out.append(f"  .amdhsa_next_free_sgpr {nsgpr}")
    out.append(f"  .amdhsa_accum_offset {acc}")
    out.append("  .amdhsa_group_segment_fixed_size 0")
    out.append("  .amdhsa_kernarg_size 80")
    out.append("  .amdhsa_user_sgpr_count 2")
    out.append("  .amdhsa_user_sgpr_kernarg_segment_ptr 1")
    out.append("  .amdhsa_system_sgpr_workgroup_id_x 1")
    out.append(".end_amdhsa_kernel")
    return "\n".join(out) + "\n"


def srd(k, d, base_lo, base_hi, off, size):
    if off:
        k(f"s_add_u32 s{d}, s{base_lo}, {off}")
        k(f"s_addc_u32 s{d+1}, s{base_hi}, 0")
    else:
        k(f"s_mov_b32 s{d}, s{base_lo}")
        k(f"s_mov_b32 s{d+1}, s{base_hi}")
    k(f"s_mov_b32 s{d+2}, {size}")
    k(f"s_mov_b32 s{d+3}, 0x00020000")


def srd_s(k, d, base_lo, base_hi, soff, size):
    k(f"s_add_u32 s{d}, s{base_lo}, s{soff}")
    k(f"s_addc_u32 s{d+1}, s{base_hi}, 0")
    k(f"s_mov_b32 s{d+2}, {size}")
    k(f"s_mov_b32 s{d+3}, 0x00020000")


def round_bf16_pair(k, a, b, tmp):
    k(f"v_cvt_pk_bf16_f32 v{tmp}, v{a}, v{b}")
    k(f"v_lshlrev_b32 v{a}, 16, v{tmp}")
    k(f"v_and_b32 v{b}, 0xffff0000, v{tmp}")


def wave_reduce(k, v, tmp, addr, op):
    for a in addr:
        k(f"ds_bpermute_b32 v{tmp}, v{a}, v{v}")
        k("s_waitcnt lgkmcnt(0)")
        k(f"{op} v{v}, v{v}, v{tmp}")


def gen_mod():
    k = K("dit_mod_kernel")
    k("s_cmp_ge_u32 s2, 36")
    L = k.newlab()
    k(f"s_cbranch_scc1 {L}")
    k(f"s_load_dwordx2 s[4:5], s[0:1], {KA_C}")
    k(f"s_load_dwordx2 s[6:7], s[0:1], {KA_WMOD}")
    k(f"s_load_dwordx2 s[8:9], s[0:1], {KA_WS}")
    k("v_lshrrev_b32 v1, 6, v0")
    k("v_and_b32 v2, 63, v0")
    k("s_nop 0")
    k("v_readfirstlane_b32 s3, v1")
    k("s_waitcnt lgkmcnt(0)")
    srd(k, 12, 4, 5, 0, 2 * 768 * 2)
    srd(k, 16, 6, 7, 0, 768 * 4608 * 2)
    srd(k, 20, 8, 9, WS_MOD, 2 * 4608 * 4)
    k("s_mul_i32 s24, s3, 96")
    k("v_add_u32 v3, s24, v2")
    k("v_lshlrev_b32 v3, 1, v3")
    k("buffer_load_ushort v4, v3, s[12:15], 0 offen")
    k("buffer_load_ushort v5, v3, s[12:15], 0 offen offset:128")
    k("buffer_load_ushort v6, v3, s[12:15], 0 offen offset:1536")
    k("buffer_load_ushort v7, v3, s[12:15], 0 offen offset:1664")
    k("s_waitcnt vmcnt(0)")
    for r in (4, 5, 6, 7):
        k(f"v_lshlrev_b32 v{r}, 16, v{r}")
    k("s_mov_b32 s25, 0xbfb8aa3b")
    for r in (4, 5, 6, 7):
        k(f"v_mul_f32 v{r+4}, s25, v{r}")
    for r in (4, 5, 6, 7):
        k(f"v_exp_f32 v{r+4}, v{r+4}")
    k("s_nop 0")
    for r in (4, 5, 6, 7):
        k(f"v_add_f32 v{r+4}, 1.0, v{r+4}")
    for r in (4, 5, 6, 7):
        k(f"v_rcp_f32 v{r+4}, v{r+4}")
    k("s_nop 0")
    for r in (4, 5, 6, 7):
        k(f"v_mul_f32 v{r}, v{r}, v{r+4}")
    round_bf16_pair(k, 4, 5, 12)
    round_bf16_pair(k, 6, 7, 12)
    k("s_lshl_b32 s26, s2, 8")
    k("s_mul_i32 s27, s24, 9216")
    k("s_add_u32 s26, s26, s27")
    k("v_lshlrev_b32 v13, 2, v2")
    k("v_add_u32 v13, s26, v13")
    for r in (14, 15, 16, 17):
        k(f"v_mov_b32 v{r}, 0")
    k("s_mov_b32 s28, 0")
    for bt in range(6):
        for i in range(16):
            kk = bt * 16 + i
            k(f"buffer_load_dword v{32+i}, v13, s[16:19], s28 offen")
            k("s_add_u32 s28, s28, 9216")
        for i in range(16):
            kk = bt * 16 + i
            ra, rb = (4, 6) if kk < 64 else (5, 7)
            ln = kk % 64
            k(f"v_readlane_b32 s30, v{ra}, {ln}")
            k(f"v_readlane_b32 s31, v{rb}, {ln}")
            k(f"s_waitcnt vmcnt({15-i})")
            k(f"v_lshlrev_b32 v18, 16, v{32+i}")
            k(f"v_and_b32 v19, 0xffff0000, v{32+i}")
            k(f"v_fma_f32 v14, v18, s30, v14")
            k(f"v_fma_f32 v15, v19, s30, v15")
            k(f"v_fma_f32 v16, v18, s31, v16")
            k(f"v_fma_f32 v17, v19, s31, v17")
    k("v_lshlrev_b32 v20, 4, v0")
    k("ds_write_b128 v20, v[14:17]")
    k("s_waitcnt lgkmcnt(0)")
    k("s_barrier")
    k("s_cmp_lg_u32 s3, 0")
    k(f"s_cbranch_scc1 {L}")
    for w in range(1, 8):
        k(f"ds_read_b128 v[{20+4*w}:{23+4*w}], v20 offset:{1024*w}")
    k("s_waitcnt lgkmcnt(0)")
    for w in range(1, 8):
        for j in range(4):
            k(f"v_add_f32 v{14+j}, v{14+j}, v{20+4*w+j}")
    round_bf16_pair(k, 14, 15, 12)
    round_bf16_pair(k, 16, 17, 12)
    k("s_lshl_b32 s26, s2, 9")
    k("v_lshlrev_b32 v13, 3, v2")
    k("v_add_u32 v13, s26, v13")
    k("buffer_store_dwordx2 v[14:15], v13, s[20:23], 0 offen")
    k("v_add_u32 v13, 18432, v13")
    k("buffer_store_dwordx2 v[16:17], v13, s[20:23], 0 offen")
    k("s_waitcnt vmcnt(0)")
    k.label(L)
    return kernel_text(k, 64), "; @launch kernel=dit_mod_kernel grid=(36,1,1) block=(512,1,1) lds=8192"


def gen_ln(name, src_is_x, shift_idx, scale_idx, dst_off):
    k = K(name)
    L = k.newlab()
    k("s_cmp_ge_u32 s2, 512")
    k(f"s_cbranch_scc1 {L}")
    k(f"s_load_dwordx2 s[4:5], s[0:1], {KA_X}")
    k(f"s_load_dwordx2 s[8:9], s[0:1], {KA_WS}")
    k("v_lshrrev_b32 v1, 6, v0")
    k("v_and_b32 v2, 63, v0")
    k("s_nop 0")
    k("v_readfirstlane_b32 s3, v1")
    k("s_waitcnt lgkmcnt(0)")
    if src_is_x:
        srd(k, 12, 4, 5, 0, 2048 * 768 * 2)
    else:
        srd(k, 12, 8, 9, WS_X2, 2048 * 768 * 2)
    srd(k, 16, 8, 9, WS_MOD, 2 * 4608 * 4)
    srd(k, 20, 8, 9, dst_off, 2048 * 768 * 2)
    k("s_lshl_b32 s24, s2, 2")
    k("s_add_u32 s24, s24, s3")
    k("s_lshr_b32 s25, s24, 10")
    k("s_mul_i32 s26, s24, 1536")
    k("v_lshlrev_b32 v3, 3, v2")
    k("buffer_load_dwordx2 v[4:5], v3, s[12:15], s26 offen")
    k("buffer_load_dwordx2 v[6:7], v3, s[12:15], s26 offen offset:512")
    k("buffer_load_dwordx2 v[8:9], v3, s[12:15], s26 offen offset:1024")
    k("s_mul_i32 s27, s25, 18432")
    k(f"s_add_u32 s28, s27, {shift_idx*3072}")
    k(f"s_add_u32 s29, s27, {scale_idx*3072}")
    k("v_lshlrev_b32 v10, 4, v2")
    for j in range(3):
        k(f"buffer_load_dwordx4 v[{40+4*j}:{43+4*j}], v10, s[16:19], s28 offen offset:{1024*j}")
    for j in range(3):
        k(f"buffer_load_dwordx4 v[{52+4*j}:{55+4*j}], v10, s[16:19], s29 offen offset:{1024*j}")
    for i, m in enumerate((1, 2, 4, 8, 16, 32)):
        k(f"v_xor_b32 v{64+i}, {m}, v2")
        k(f"v_lshlrev_b32 v{64+i}, 2, v{64+i}")
    k("s_waitcnt vmcnt(6)")
    for j in range(6):
        k(f"v_lshlrev_b32 v{12+2*j}, 16, v{4+j}")
        k(f"v_and_b32 v{13+2*j}, 0xffff0000, v{4+j}")
    k("v_add_f32 v24, v12, v13")
    for j in range(14, 24):
        k(f"v_add_f32 v24, v24, v{j}")
    wave_reduce(k, 24, 25, range(64, 70), "v_add_f32")
    k("v_mul_f32 v24, 0x3aaaaaab, v24")
    k("v_sub_f32 v26, v12, v24")
    k("v_mul_f32 v27, v26, v26")
    for j in range(13, 24):
        k(f"v_sub_f32 v26, v{j}, v24")
        k(f"v_fmac_f32 v27, v26, v26")
    wave_reduce(k, 27, 25, range(64, 70), "v_add_f32")
    k("v_mul_f32 v27, 0x3aaaaaab, v27")
    round_bf16_pair(k, 24, 27, 25)
    k("v_add_f32 v27, 0x3727c5ac, v27")
    k("v_mov_b32 v26, 0")
    round_bf16_pair(k, 27, 26, 25)
    k("v_sqrt_f32 v27, v27")
    k("s_nop 0")
    round_bf16_pair(k, 27, 26, 25)
    k("v_rcp_f32 v27, v27")
    for j in range(12, 24):
        k(f"v_sub_f32 v{j}, v{j}, v24")
    for j in range(12, 24, 2):
        round_bf16_pair(k, j, j + 1, 25)
    for j in range(12, 24):
        k(f"v_mul_f32 v{j}, v{j}, v27")
    for j in range(12, 24, 2):
        round_bf16_pair(k, j, j + 1, 25)
    k("s_waitcnt vmcnt(0)")
    for j in range(12):
        k(f"v_add_f32 v{52+j}, 1.0, v{52+j}")
    for j in range(0, 12, 2):
        round_bf16_pair(k, 52 + j, 53 + j, 25)
    for j in range(12):
        k(f"v_mul_f32 v{12+j}, v{12+j}, v{52+j}")
    for j in range(12, 24, 2):
        round_bf16_pair(k, j, j + 1, 25)
    for j in range(12):
        k(f"v_add_f32 v{12+j}, v{12+j}, v{40+j}")
    for j in range(6):
        k(f"v_cvt_pk_bf16_f32 v{4+j}, v{12+2*j}, v{13+2*j}")
    k("buffer_store_dwordx2 v[4:5], v3, s[20:23], s26 offen")
    k("buffer_store_dwordx2 v[6:7], v3, s[20:23], s26 offen offset:512")
    k("buffer_store_dwordx2 v[8:9], v3, s[20:23], s26 offen offset:1024")
    k("s_waitcnt vmcnt(0)")
    k.label(L)
    return kernel_text(k, 72), f"; @launch kernel={name} grid=(512,1,1) block=(256,1,1) lds=0"


def gen_softmax():
    k = K("dit_softmax_kernel")
    L = k.newlab()
    k("s_cmp_ge_u32 s2, 1024")
    k(f"s_cbranch_scc1 {L}")
    k(f"s_load_dwordx2 s[8:9], s[0:1], {KA_WS}")
    k("v_lshrrev_b32 v1, 6, v0")
    k("v_and_b32 v2, 63, v0")
    k("s_nop 0")
    k("v_readfirstlane_b32 s3, v1")
    k("s_waitcnt lgkmcnt(0)")
    srd(k, 12, 8, 9, WS_S, 4096 * 1024 * 2)
    srd(k, 16, 8, 9, WS_P, 4096 * 1024 * 2)
    k("s_lshl_b32 s24, s2, 2")
    k("s_add_u32 s24, s24, s3")
    k("s_lshl_b32 s26, s24, 11")
    k("v_lshlrev_b32 v3, 4, v2")
    k("buffer_load_dwordx4 v[4:7], v3, s[12:15], s26 offen")
    k("buffer_load_dwordx4 v[8:11], v3, s[12:15], s26 offen offset:1024")
    for i, m in enumerate((1, 2, 4, 8, 16, 32)):
        k(f"v_xor_b32 v{64+i}, {m}, v2")
        k(f"v_lshlrev_b32 v{64+i}, 2, v{64+i}")
    k("s_waitcnt vmcnt(0)")
    for j in range(8):
        k(f"v_lshlrev_b32 v{12+2*j}, 16, v{4+j}")
        k(f"v_and_b32 v{13+2*j}, 0xffff0000, v{4+j}")
    k("v_max_f32 v30, v12, v13")
    for j in range(14, 28):
        k(f"v_max_f32 v30, v30, v{j}")
    wave_reduce(k, 30, 31, range(64, 70), "v_max_f32")
    k("s_mov_b32 s27, 0x3fb8aa3b")
    for j in range(12, 28):
        k(f"v_sub_f32 v{j}, v{j}, v30")
    for j in range(12, 28):
        k(f"v_mul_f32 v{j}, s27, v{j}")
    for j in range(12, 28):
        k(f"v_exp_f32 v{j}, v{j}")
    k("s_nop 0")
    k("v_add_f32 v32, v12, v13")
    for j in range(14, 28):
        k(f"v_add_f32 v32, v32, v{j}")
    wave_reduce(k, 32, 31, range(64, 70), "v_add_f32")
    k("v_rcp_f32 v32, v32")
    k("s_nop 0")
    for j in range(12, 28):
        k(f"v_mul_f32 v{j}, v{j}, v32")
    for j in range(8):
        k(f"v_cvt_pk_bf16_f32 v{4+j}, v{12+2*j}, v{13+2*j}")
    k("buffer_store_dwordx4 v[4:7], v3, s[16:19], s26 offen")
    k("buffer_store_dwordx4 v[8:11], v3, s[16:19], s26 offen offset:1024")
    k("s_waitcnt vmcnt(0)")
    k.label(L)
    return kernel_text(k, 72), "; @launch kernel=dit_softmax_kernel grid=(1024,1,1) block=(256,1,1) lds=0"


class Gemm:
    pass


def gen_gemm(name, BM, BN, K_, nbatch, tiles_m, tiles_n,
             a_src, a_off, a_bstride, lda, a_size,
             b_src, b_off, b_bstride, ldb, b_size, b_layout,
             o_src, o_off, o_bstride, ldo, o_size,
             epi, gate_idx=None, res_src=None, res_off=0):
    k = K(name)
    WM, WN = BM // 2, BN // 2
    MT, NT = WM // 16, WN // 16
    nsteps = K_ // 64
    NA = BM // 32
    NB = BN // 32
    A_BYTES = BM * 128
    if b_layout == "NN":
        BSTR = BN * 2 + 32
        BBLK = 8 * BSTR + 128
        B_BYTES = 8 * BBLK
    else:
        B_BYTES = BN * 128
    BUF = 0x10000
    assert A_BYTES + B_BYTES <= BUF
    nwg = nbatch * tiles_m * tiles_n
    L = k.newlab()
    k(f"s_cmp_ge_u32 s2, {nwg}")
    k(f"s_cbranch_scc1 {L}")
    k(f"s_load_dwordx2 s[4:5], s[0:1], {a_src}")
    k(f"s_load_dwordx2 s[6:7], s[0:1], {b_src}")
    k(f"s_load_dwordx2 s[8:9], s[0:1], {o_src}")
    k(f"s_load_dwordx2 s[10:11], s[0:1], {KA_WS}")
    if res_src is not None:
        k(f"s_load_dwordx2 s[40:41], s[0:1], {res_src}")
    def divmod_const(dst_q, dst_r, src, d):
        magic = (1 << 32) // d + 1
        k(f"s_mul_hi_u32 s{dst_q}, s{src}, {magic}")
        k(f"s_mul_i32 s{dst_r}, s{dst_q}, {d}")
        k(f"s_sub_u32 s{dst_r}, s{src}, s{dst_r}")
    divmod_const(30, 31, 2, tiles_n)
    divmod_const(32, 33, 30, tiles_m)
    k("v_lshrrev_b32 v1, 6, v0")
    k("v_and_b32 v2, 63, v0")
    k("s_nop 0")
    k("v_readfirstlane_b32 s3, v1")
    k("s_waitcnt lgkmcnt(0)")
    k(f"s_mul_i32 s34, s32, {a_bstride}")
    k(f"s_add_u32 s34, s34, {a_off}")
    srd_s(k, 12, 4, 5, 34, a_size)
    k(f"s_mul_i32 s34, s32, {b_bstride}")
    k(f"s_add_u32 s34, s34, {b_off}")
    srd_s(k, 16, 6, 7, 34, b_size)
    k(f"s_mul_i32 s34, s32, {o_bstride}")
    k(f"s_add_u32 s34, s34, {o_off}")
    srd_s(k, 20, 8, 9, 34, o_size)
    srd(k, 24, 10, 11, WS_MOD, 2 * 4608 * 4)
    if res_src is not None:
        srd(k, 44, 40, 41, res_off, 2048 * 768 * 2)
    vAg = list(range(4, 4 + NA))
    vBg = list(range(8, 8 + NB))
    vAw = 14
    vBw = list(range(15, 15 + NB))
    vAr = [21, 22]
    vBr = [23, 24]
    vT = [25, 26, 27, 28, 29, 30, 31]
    stA = 32
    stB = stA + 4 * NA
    frA = stB + 4 * NB
    frB = frA + 2 * MT * 4
    acc = frB + 2 * NT * 4
    nv = acc + MT * NT * 4
    assert nv <= 256, nv
    t0, t1, t2, t3 = vT[0], vT[1], vT[2], vT[3]
    k(f"v_lshrrev_b32 v{t0}, 3, v0")
    k(f"v_and_b32 v{t1}, 7, v0")
    k(f"s_mul_i32 s35, s33, {BM}")
    k(f"v_add_u32 v{t2}, s35, v{t0}")
    k(f"s_mov_b32 s36, {lda*2}")
    k(f"v_mul_lo_u32 v{t2}, v{t2}, s36")
    k(f"v_lshl_add_u32 v{vAg[0]}, v{t1}, 4, v{t2}")
    for i in range(1, NA):
        k(f"v_add_u32 v{vAg[i]}, {32*i*lda*2}, v{vAg[0]}")
    k(f"v_and_b32 v{t2}, 7, v{t0}")
    k(f"v_xor_b32 v{t2}, v{t2}, v{t1}")
    k(f"v_lshlrev_b32 v{t2}, 4, v{t2}")
    k(f"v_lshl_add_u32 v{vAw}, v{t0}, 7, v{t2}")
    if b_layout == "NT":
        k(f"s_mul_i32 s35, s31, {BN}")
        k(f"v_add_u32 v{t3}, s35, v{t0}")
        k(f"s_mov_b32 s36, {ldb*2}")
        k(f"v_mul_lo_u32 v{t3}, v{t3}, s36")
        k(f"v_lshl_add_u32 v{vBg[0]}, v{t1}, 4, v{t3}")
        for i in range(1, NB):
            k(f"v_add_u32 v{vBg[i]}, {32*i*ldb*2}, v{vBg[0]}")
        k(f"v_add_u32 v{vBw[0]}, {A_BYTES}, v{vAw}")
    else:
        CPR = BN // 8
        magic = (1 << 32) // CPR + 1
        k(f"s_mov_b32 s36, {magic}")
        k(f"s_mul_i32 s35, s31, {BN*2}")
        for i in range(NB):
            k(f"v_add_u32 v{t2}, {256*i}, v0")
            k(f"v_mul_hi_u32 v{t3}, v{t2}, s36")
            k(f"v_mul_u32_u24 v{vT[4]}, {CPR}, v{t3}")
            k(f"v_sub_u32 v{vT[4]}, v{t2}, v{vT[4]}")
            k(f"s_mov_b32 s37, {ldb*2}")
            k(f"v_mul_lo_u32 v{vT[5]}, v{t3}, s37")
            k(f"v_lshl_add_u32 v{vT[5]}, v{vT[4]}, 4, v{vT[5]}")
            k(f"v_add_u32 v{vBg[i]}, s35, v{vT[5]}")
            k(f"v_mul_u32_u24 v{vT[5]}, {BSTR}, v{t3}")
            k(f"v_lshrrev_b32 v{vT[6]}, 3, v{t3}")
            k(f"v_lshl_add_u32 v{vT[5]}, v{vT[6]}, 7, v{vT[5]}")
            k(f"v_lshl_add_u32 v{vT[5]}, v{vT[4]}, 4, v{vT[5]}")
            k(f"v_add_u32 v{vBw[i]}, {A_BYTES}, v{vT[5]}")
    k("v_lshrrev_b32 v{0}, 1, v1".format(t0))
    k("v_and_b32 v{0}, 1, v1".format(t1))
    k(f"v_and_b32 v{t2}, 15, v2")
    k(f"v_lshrrev_b32 v{t3}, 4, v2")
    k(f"v_mul_u32_u24 v{vT[4]}, {WM}, v{t0}")
    k(f"v_add_u32 v{vT[4]}, v{vT[4]}, v{t2}")
    k(f"v_and_b32 v{vT[5]}, 7, v2")
    k(f"v_xor_b32 v{vT[5]}, v{vT[5]}, v{t3}")
    k(f"v_lshlrev_b32 v{vT[5]}, 4, v{vT[5]}")
    k(f"v_lshl_add_u32 v{vAr[0]}, v{vT[4]}, 7, v{vT[5]}")
    k(f"v_xor_b32 v{vAr[1]}, 64, v{vAr[0]}")
    if b_layout == "NT":
        k(f"v_mul_u32_u24 v{vT[4]}, {WN}, v{t1}")
        k(f"v_add_u32 v{vT[4]}, v{vT[4]}, v{t2}")
        k(f"v_lshl_add_u32 v{vBr[0]}, v{vT[4]}, 7, v{vT[5]}")
        k(f"v_add_u32 v{vBr[0]}, {A_BYTES}, v{vBr[0]}")
        k(f"v_xor_b32 v{vBr[1]}, 64, v{vBr[0]}")
    else:
        k(f"v_lshrrev_b32 v{vT[4]}, 2, v{t2}")
        k(f"v_lshl_add_u32 v{vT[4]}, v{t3}, 3, v{vT[4]}")
        k(f"v_mul_u32_u24 v{vT[4]}, {BSTR}, v{vT[4]}")
        k(f"v_lshl_add_u32 v{vT[4]}, v{t3}, 7, v{vT[4]}")
        k(f"v_and_b32 v{vT[5]}, 3, v2")
        k(f"v_lshl_add_u32 v{vT[4]}, v{vT[5]}, 3, v{vT[4]}")
        k(f"v_mul_u32_u24 v{vT[5]}, {WN*2}, v{t1}")
        k(f"v_add3_u32 v{vBr[0]}, v{vT[4]}, v{vT[5]}, {A_BYTES if A_BYTES<=64 else 0}")
        if A_BYTES > 64:
            k(f"v_add_u32 v{vBr[0]}, {A_BYTES}, v{vBr[0]}")
    for i in range(MT * NT * 4):
        k(f"v_mov_b32 v{acc+i}, 0")
    k("s_mov_b32 s38, 0")
    k("s_mov_b32 s39, 0")
    bstep = 64 * ldb * 2 if b_layout == "NN" else 128

    def gloads():
        for i in range(NA):
            k(f"buffer_load_dwordx4 v[{stA+4*i}:{stA+4*i+3}], v{vAg[i]}, s[12:15], s38 offen")
        for i in range(NB):
            k(f"buffer_load_dwordx4 v[{stB+4*i}:{stB+4*i+3}], v{vBg[i]}, s[16:19], s39 offen")
        k("s_add_u32 s38, s38, 128")
        k(f"s_add_u32 s39, s39, {bstep}")

    def lwrites():
        for i in range(NA):
            k(f"ds_write_b128 v{vAw}, v[{stA+4*i}:{stA+4*i+3}] offset:{4096*i}")
        for i in range(NB):
            if b_layout == "NT":
                k(f"ds_write_b128 v{vBw[0]}, v[{stB+4*i}:{stB+4*i+3}] offset:{4096*i}")
            else:
                k(f"ds_write_b128 v{vBw[i]}, v[{stB+4*i}:{stB+4*i+3}]")

    def toggle_w():
        k(f"v_xor_b32 v{vAw}, {BUF}, v{vAw}")
        for r in (vBw if b_layout == "NN" else vBw[:1]):
            k(f"v_xor_b32 v{r}, {BUF}, v{r}")

    def toggle_r():
        for r in vAr + (vBr if b_layout == "NT" else vBr[:1]):
            k(f"v_xor_b32 v{r}, {BUF}, v{r}")

    def freads(kk):
        n = 0
        for i in range(MT):
            r = frA + (kk * MT + i) * 4
            k(f"ds_read_b128 v[{r}:{r+3}], v{vAr[kk]} offset:{2048*i}")
            n += 1
        for j in range(NT):
            r = frB + (kk * NT + j) * 4
            if b_layout == "NT":
                k(f"ds_read_b128 v[{r}:{r+3}], v{vBr[kk]} offset:{2048*j}")
                n += 1
            else:
                o = kk * 4 * BBLK + j * 32
                k(f"ds_read_b64_tr_b16 v[{r}:{r+1}], v{vBr[0]} offset:{o}")
                k(f"ds_read_b64_tr_b16 v[{r+2}:{r+3}], v{vBr[0]} offset:{o+4*BSTR}")
                n += 2
        return n

    def mfmas(kk):
        for i in range(MT):
            for j in range(NT):
                a = frA + (kk * MT + i) * 4
                b = frB + (kk * NT + j) * 4
                c = acc + (i * NT + j) * 4
                k(f"v_mfma_f32_16x16x32_bf16 v[{c}:{c+3}], v[{b}:{b+3}], v[{a}:{a+3}], v[{c}:{c+3}]")

    gloads()
    k("s_waitcnt vmcnt(0)")
    lwrites()
    toggle_w()
    k("s_waitcnt lgkmcnt(0)")
    k("s_barrier")
    k(f"s_mov_b32 s42, {nsteps-1}")
    Lp = k.newlab()
    k.label(Lp)
    gloads()
    n1 = freads(0)
    n2 = freads(1)
    k(f"s_waitcnt lgkmcnt({min(n2,15)})")
    mfmas(0)
    k("s_waitcnt lgkmcnt(0)")
    mfmas(1)
    k("s_waitcnt vmcnt(0)")
    lwrites()
    toggle_w()
    toggle_r()
    k("s_waitcnt lgkmcnt(0)")
    k("s_barrier")
    k("s_sub_u32 s42, s42, 1")
    k("s_cmp_lg_u32 s42, 0")
    k(f"s_cbranch_scc1 {Lp}")
    n1 = freads(0)
    n2 = freads(1)
    k(f"s_waitcnt lgkmcnt({min(n2,15)})")
    mfmas(0)
    k("s_waitcnt lgkmcnt(0)")
    mfmas(1)
    vO = vT[4]
    k(f"s_mul_i32 s35, s33, {BM}")
    k(f"v_mul_u32_u24 v{vT[5]}, {WM}, v{t0}")
    k(f"v_add3_u32 v{vT[5]}, v{vT[5]}, v{t2}, s35")
    k(f"s_mul_i32 s36, s31, {BN}")
    k(f"v_mul_u32_u24 v{vT[6]}, {WN}, v{t1}")
    k(f"v_lshl_add_u32 v{vT[6]}, v{t3}, 2, v{vT[6]}")
    k(f"v_add_u32 v{vT[6]}, s36, v{vT[6]}")
    k(f"s_mov_b32 s37, {ldo*2}")
    k(f"v_mul_lo_u32 v{vO}, v{vT[5]}, s37")
    k(f"v_lshl_add_u32 v{vO}, v{vT[6]}, 1, v{vO}")
    e0 = stA
    if epi == "gateres":
        k(f"s_lshr_b32 s37, s35, 10")
        k(f"s_mul_i32 s37, s37, 18432")
        k(f"s_add_u32 s37, s37, {gate_idx*3072}")
        k(f"v_lshlrev_b32 v{vT[6]}, 2, v{vT[6]}")
        for j in range(NT):
            k(f"buffer_load_dwordx4 v[{e0+4*j}:{e0+4*j+3}], v{vT[6]}, s[24:27], s37 offen offset:{64*j}")
    k("s_nop 7")
    k("s_nop 7")
    g0 = e0
    r0 = e0 + 4 * NT
    for i in range(MT):
        if epi == "gateres":
            for j in range(NT):
                k(f"buffer_load_dwordx2 v[{r0+2*j}:{r0+2*j+1}], v{vO}, s[44:47], 0 offen offset:{32*j}")
            k("s_waitcnt vmcnt(0)")
        for j in range(NT):
            c = acc + (i * NT + j) * 4
            if epi == "plain":
                pass
            elif epi == "sscale":
                round_bf16_pair(k, c, c + 1, vT[5])
                round_bf16_pair(k, c + 2, c + 3, vT[5])
                for q in range(4):
                    k(f"v_mul_f32 v{c+q}, 0x3d5105ec, v{c+q}")
            elif epi == "gelu":
                round_bf16_pair(k, c, c + 1, vT[5])
                round_bf16_pair(k, c + 2, c + 3, vT[5])
                for q in range(4):
                    x = c + q
                    tt = r0 + q
                    k(f"v_mul_f32 v{tt}, v{x}, v{x}")
                    k(f"v_mul_f32 v{tt}, 0x3d372713, v{tt}")
                    k(f"v_add_f32 v{tt}, 1.0, v{tt}")
                    k(f"v_mul_f32 v{tt}, v{tt}, v{x}")
                    k(f"v_mul_f32 v{tt}, 0xc0135761, v{tt}")
                for q in range(4):
                    k(f"v_exp_f32 v{r0+q}, v{r0+q}")
                k("s_nop 0")
                for q in range(4):
                    k(f"v_add_f32 v{r0+q}, 1.0, v{r0+q}")
                for q in range(4):
                    k(f"v_rcp_f32 v{r0+q}, v{r0+q}")
                k("s_nop 0")
                for q in range(4):
                    k(f"v_mul_f32 v{c+q}, v{c+q}, v{r0+q}")
            elif epi == "gateres":
                round_bf16_pair(k, c, c + 1, vT[5])
                round_bf16_pair(k, c + 2, c + 3, vT[5])
                for q in range(4):
                    k(f"v_mul_f32 v{c+q}, v{c+q}, v{g0+4*j+q}")
                round_bf16_pair(k, c, c + 1, vT[5])
                round_bf16_pair(k, c + 2, c + 3, vT[5])
                ra = r0 + 2 * j
                k(f"v_lshlrev_b32 v{vT[5]}, 16, v{ra}")
                k(f"v_add_f32 v{c}, v{c}, v{vT[5]}")
                k(f"v_and_b32 v{vT[5]}, 0xffff0000, v{ra}")
                k(f"v_add_f32 v{c+1}, v{c+1}, v{vT[5]}")
                k(f"v_lshlrev_b32 v{vT[5]}, 16, v{ra+1}")
                k(f"v_add_f32 v{c+2}, v{c+2}, v{vT[5]}")
                k(f"v_and_b32 v{vT[5]}, 0xffff0000, v{ra+1}")
                k(f"v_add_f32 v{c+3}, v{c+3}, v{vT[5]}")
            k(f"v_cvt_pk_bf16_f32 v{c}, v{c}, v{c+1}")
            k(f"v_cvt_pk_bf16_f32 v{c+1}, v{c+2}, v{c+3}")
            k(f"buffer_store_dwordx2 v[{c}:{c+1}], v{vO}, s[20:23], 0 offen offset:{32*j}")
        if i + 1 < MT:
            k(f"v_add_u32 v{vO}, {16*ldo*2}, v{vO}")
    k("s_waitcnt vmcnt(0)")
    k.label(L)
    return kernel_text(k, nv), f"; @launch kernel={name} grid=({nwg},1,1) block=(256,1,1) lds={2*BUF}"


def main():
    parts = []
    parts.append(gen_mod())
    parts.append(gen_ln("dit_ln1_kernel", True, 0, 1, WS_H))
    parts.append(gen_gemm("dit_qkv_kernel", 128, 192, 768, 1, 16, 12,
                          KA_WS, WS_H, 0, 768, 2048 * 768 * 2,
                          KA_WQKV, 0, 0, 2304, 768 * 2304 * 2, "NN",
                          KA_WS, WS_QKV, 0, 2304, 2048 * 2304 * 2, "plain"))
    parts.append(gen_gemm_bh("dit_s_kernel", "S"))
    parts.append(gen_softmax())
    parts.append(gen_gemm_bh("dit_pv_kernel", "PV"))
    parts.append(gen_gemm("dit_wo_kernel", 64, 96, 768, 1, 32, 8,
                          KA_WS, WS_AO, 0, 768, 2048 * 768 * 2,
                          KA_WO, 0, 0, 768, 768 * 768 * 2, "NN",
                          KA_WS, WS_X2, 0, 768, 2048 * 768 * 2, "gateres", gate_idx=2, res_src=KA_X, res_off=0))
    parts.append(gen_ln("dit_ln2_kernel", False, 3, 4, WS_H2))
    parts.append(gen_gemm("dit_fc1_kernel", 128, 192, 768, 1, 16, 16,
                          KA_WS, WS_H2, 0, 768, 2048 * 768 * 2,
                          KA_FC1, 0, 0, 3072, 768 * 3072 * 2, "NN",
                          KA_WS, WS_G, 0, 3072, 2048 * 3072 * 2, "gelu"))
    parts.append(gen_gemm("dit_fc2_kernel", 64, 96, 3072, 1, 32, 8,
                          KA_WS, WS_G, 0, 3072, 2048 * 3072 * 2,
                          KA_FC2, 0, 0, 768, 3072 * 768 * 2, "NN",
                          KA_OUT, 0, 0, 768, 2048 * 768 * 2, "gateres", gate_idx=5, res_src=KA_WS, res_off=WS_X2))
    hdr = open("standalone__dit_block__diffusion.s.ref").read().split("; Override launch")[0]
    out = hdr
    for _, l in parts:
        out += l + "\n"
    out += '.amdgcn_target "amdgcn-amd-amdhsa--gfx950"\n'
    for t, _ in parts:
        out += t
    open(sys.argv[1] if len(sys.argv) > 1 else "standalone__dit_block__diffusion.s", "w").write(out)


def gen_gemm_bh(name, kind):
    if kind == "S":
        return gen_gemm_bh_impl(name, 128, 128, 384, 8, 8,
                                a=(WS_QKV, 2304), b=(WS_QKV + 768 * 2, 2304), layout="NT",
                                o=(WS_S, 1024 * 1024 * 2, 1024), epi="sscale", a_is_qkv=True)
    else:
        return gen_gemm_bh_impl(name, 64, 96, 1024, 16, 4,
                                a=(WS_P, 1024), b=(WS_QKV + 1536 * 2, 2304), layout="NN",
                                o=(WS_AO, None, 768), epi="plain", a_is_qkv=False)


def gen_gemm_bh_impl(name, BM, BN, K_, tiles_m, tiles_n, a, b, layout, o, epi, a_is_qkv):
    text, launch = gen_gemm(name, BM, BN, K_, 4, tiles_m, tiles_n,
                            KA_WS, a[0], 111111 if a_is_qkv else 1024 * 1024 * 2, a[1],
                            (2048 * 2304 * 2) if a_is_qkv else 4096 * 1024 * 2,
                            KA_WS, b[0], 111111, b[1], 2048 * 2304 * 2, layout,
                            KA_WS, o[0], o[1] if o[1] is not None else 222222, o[2],
                            4096 * 1024 * 2 if o[1] is not None else 2048 * 768 * 2, epi)
    qkv_off = ("    s_lshr_b32 s34, s32, 1\n    s_mul_i32 s34, s34, 4718592\n"
               "    s_and_b32 s43, s32, 1\n    s_mul_i32 s43, s43, 768\n    s_add_u32 s34, s34, s43\n")
    text = text.replace("    s_mul_i32 s34, s32, 111111\n", qkv_off)
    ao_off = ("    s_lshr_b32 s34, s32, 1\n    s_mul_i32 s34, s34, 1572864\n"
              "    s_and_b32 s43, s32, 1\n    s_mul_i32 s43, s43, 768\n    s_add_u32 s34, s34, s43\n")
    text = text.replace("    s_mul_i32 s34, s32, 222222\n", ao_off)
    return text, launch


if __name__ == "__main__":
    main()
```

```python
import sys

WS_MOD = 0x0
WS_H   = 0x100000
WS_QKV = 0x400000
WS_S   = 0x1000000
WS_P   = 0x1800000
WS_AO  = 0x2000000
WS_X2  = 0x2400000
WS_H2  = 0x2800000
WS_G   = 0x2C00000

KA_X, KA_C, KA_WQKV, KA_WO, KA_WMOD, KA_FC1, KA_FC2, KA_OUT, KA_DBG, KA_WS = [8 * i for i in range(10)]


class K:
    def __init__(self, name):
        self.name = name
        self.lines = []
        self.vmax = 0
        self.lab = 0

    def __call__(self, s):
        self.lines.append("    " + s)

    def label(self, l):
        self.lines.append(l + ":")

    def newlab(self, p="L"):
        self.lab += 1
        return f"{p}_{self.name}_{self.lab}"


def kernel_text(k, nvgpr, nsgpr=100):
    nv = ((nvgpr + 7) // 8) * 8
    acc = ((nvgpr + 3) // 4) * 4
    out = []
    out.append(".text")
    out.append(f".globl {k.name}")
    out.append(".p2align 8")
    out.append(f".type {k.name},@function")
    out.append(f"{k.name}:")
    out += k.lines
    out.append("    s_endpgm")
    out.append('.section .rodata,"a"')
    out.append(".p2align 6")
    out.append(f".amdhsa_kernel {k.name}")
    out.append(f"  .amdhsa_next_free_vgpr {nv}")
    out.append(f"  .amdhsa_next_free_sgpr {nsgpr}")
    out.append(f"  .amdhsa_accum_offset {acc}")
    out.append("  .amdhsa_group_segment_fixed_size 0")
    out.append("  .amdhsa_kernarg_size 80")
    out.append("  .amdhsa_user_sgpr_count 2")
    out.append("  .amdhsa_user_sgpr_kernarg_segment_ptr 1")
    out.append("  .amdhsa_system_sgpr_workgroup_id_x 1")
    out.append(".end_amdhsa_kernel")
    return "\n".join(out) + "\n"


def srd(k, d, base_lo, base_hi, off, size):
    if off:
        k(f"s_add_u32 s{d}, s{base_lo}, {off}")
        k(f"s_addc_u32 s{d+1}, s{base_hi}, 0")
    else:
        k(f"s_mov_b32 s{d}, s{base_lo}")
        k(f"s_mov_b32 s{d+1}, s{base_hi}")
    k(f"s_mov_b32 s{d+2}, {size}")
    k(f"s_mov_b32 s{d+3}, 0x00020000")


def srd_s(k, d, base_lo, base_hi, soff, size):
    k(f"s_add_u32 s{d}, s{base_lo}, s{soff}")
    k(f"s_addc_u32 s{d+1}, s{base_hi}, 0")
    k(f"s_mov_b32 s{d+2}, {size}")
    k(f"s_mov_b32 s{d+3}, 0x00020000")


def round_bf16_pair(k, a, b, tmp):
    k(f"v_cvt_pk_bf16_f32 v{tmp}, v{a}, v{b}")
    k(f"v_lshlrev_b32 v{a}, 16, v{tmp}")
    k(f"v_and_b32 v{b}, 0xffff0000, v{tmp}")


def wave_reduce(k, v, tmp, addr, op):
    for a in addr:
        k(f"ds_bpermute_b32 v{tmp}, v{a}, v{v}")
        k("s_waitcnt lgkmcnt(0)")
        k(f"{op} v{v}, v{v}, v{tmp}")


def gen_mod():
    k = K("dit_mod_kernel")
    k("s_cmp_ge_u32 s2, 36")
    L = k.newlab()
    k(f"s_cbranch_scc1 {L}")
    k(f"s_load_dwordx2 s[4:5], s[0:1], {KA_C}")
    k(f"s_load_dwordx2 s[6:7], s[0:1], {KA_WMOD}")
    k(f"s_load_dwordx2 s[8:9], s[0:1], {KA_WS}")
    k("v_lshrrev_b32 v1, 6, v0")
    k("v_and_b32 v2, 63, v0")
    k("s_nop 0")
    k("v_readfirstlane_b32 s3, v1")
    k("s_waitcnt lgkmcnt(0)")
    srd(k, 12, 4, 5, 0, 2 * 768 * 2)
    srd(k, 16, 6, 7, 0, 768 * 4608 * 2)
    srd(k, 20, 8, 9, WS_MOD, 2 * 4608 * 4)
    k("s_mul_i32 s24, s3, 96")
    k("v_add_u32 v3, s24, v2")
    k("v_lshlrev_b32 v3, 1, v3")
    k("buffer_load_ushort v4, v3, s[12:15], 0 offen")
    k("buffer_load_ushort v5, v3, s[12:15], 0 offen offset:128")
    k("buffer_load_ushort v6, v3, s[12:15], 0 offen offset:1536")
    k("buffer_load_ushort v7, v3, s[12:15], 0 offen offset:1664")
    k("s_waitcnt vmcnt(0)")
    for r in (4, 5, 6, 7):
        k(f"v_lshlrev_b32 v{r}, 16, v{r}")
    k("s_mov_b32 s25, 0xbfb8aa3b")
    for r in (4, 5, 6, 7):
        k(f"v_mul_f32 v{r+4}, s25, v{r}")
    for r in (4, 5, 6, 7):
        k(f"v_exp_f32 v{r+4}, v{r+4}")
    k("s_nop 0")
    for r in (4, 5, 6, 7):
        k(f"v_add_f32 v{r+4}, 1.0, v{r+4}")
    for r in (4, 5, 6, 7):
        k(f"v_rcp_f32 v{r+4}, v{r+4}")
    k("s_nop 0")
    for r in (4, 5, 6, 7):
        k(f"v_mul_f32 v{r}, v{r}, v{r+4}")
    round_bf16_pair(k, 4, 5, 12)
    round_bf16_pair(k, 6, 7, 12)
    k("s_lshl_b32 s26, s2, 8")
    k("s_mul_i32 s27, s24, 9216")
    k("s_add_u32 s26, s26, s27")
    k("v_lshlrev_b32 v13, 2, v2")
    k("v_add_u32 v13, s26, v13")
    for r in (14, 15, 16, 17):
        k(f"v_mov_b32 v{r}, 0")
    k("s_mov_b32 s28, 0")
    for bt in range(6):
        for i in range(16):
            kk = bt * 16 + i
            k(f"buffer_load_dword v{32+i}, v13, s[16:19], s28 offen")
            k("s_add_u32 s28, s28, 9216")
        for i in range(16):
            kk = bt * 16 + i
            ra, rb = (4, 6) if kk < 64 else (5, 7)
            ln = kk % 64
            k(f"v_readlane_b32 s30, v{ra}, {ln}")
            k(f"v_readlane_b32 s31, v{rb}, {ln}")
            k(f"s_waitcnt vmcnt({15-i})")
            k(f"v_lshlrev_b32 v18, 16, v{32+i}")
            k(f"v_and_b32 v19, 0xffff0000, v{32+i}")
            k(f"v_fma_f32 v14, v18, s30, v14")
            k(f"v_fma_f32 v15, v19, s30, v15")
            k(f"v_fma_f32 v16, v18, s31, v16")
            k(f"v_fma_f32 v17, v19, s31, v17")
    k("v_lshlrev_b32 v20, 4, v0")
    k("ds_write_b128 v20, v[14:17]")
    k("s_waitcnt lgkmcnt(0)")
    k("s_barrier")
    k("s_cmp_lg_u32 s3, 0")
    k(f"s_cbranch_scc1 {L}")
    for w in range(1, 8):
        k(f"ds_read_b128 v[{20+4*w}:{23+4*w}], v20 offset:{1024*w}")
    k("s_waitcnt lgkmcnt(0)")
    for w in range(1, 8):
        for j in range(4):
            k(f"v_add_f32 v{14+j}, v{14+j}, v{20+4*w+j}")
    round_bf16_pair(k, 14, 15, 12)
    round_bf16_pair(k, 16, 17, 12)
    k("s_lshl_b32 s26, s2, 9")
    k("v_lshlrev_b32 v13, 3, v2")
    k("v_add_u32 v13, s26, v13")
    k("buffer_store_dwordx2 v[14:15], v13, s[20:23], 0 offen")
    k("v_add_u32 v13, 18432, v13")
    k("buffer_store_dwordx2 v[16:17], v13, s[20:23], 0 offen")
    k("s_waitcnt vmcnt(0)")
    k.label(L)
    return kernel_text(k, 64), "; @launch kernel=dit_mod_kernel grid=(36,1,1) block=(512,1,1) lds=8192"


def gen_ln(name, src_is_x, shift_idx, scale_idx, dst_off):
    k = K(name)
    L = k.newlab()
    k("s_cmp_ge_u32 s2, 512")
    k(f"s_cbranch_scc1 {L}")
    k(f"s_load_dwordx2 s[4:5], s[0:1], {KA_X}")
    k(f"s_load_dwordx2 s[8:9], s[0:1], {KA_WS}")
    k("v_lshrrev_b32 v1, 6, v0")
    k("v_and_b32 v2, 63, v0")
    k("s_nop 0")
    k("v_readfirstlane_b32 s3, v1")
    k("s_waitcnt lgkmcnt(0)")
    if src_is_x:
        srd(k, 12, 4, 5, 0, 2048 * 768 * 2)
    else:
        srd(k, 12, 8, 9, WS_X2, 2048 * 768 * 2)
    srd(k, 16, 8, 9, WS_MOD, 2 * 4608 * 4)
    srd(k, 20, 8, 9, dst_off, 2048 * 768 * 2)
    k("s_lshl_b32 s24, s2, 2")
    k("s_add_u32 s24, s24, s3")
    k("s_lshr_b32 s25, s24, 10")
    k("s_mul_i32 s26, s24, 1536")
    k("v_lshlrev_b32 v3, 3, v2")
    k("buffer_load_dwordx2 v[4:5], v3, s[12:15], s26 offen")
    k("buffer_load_dwordx2 v[6:7], v3, s[12:15], s26 offen offset:512")
    k("buffer_load_dwordx2 v[8:9], v3, s[12:15], s26 offen offset:1024")
    k("s_mul_i32 s27, s25, 18432")
    k(f"s_add_u32 s28, s27, {shift_idx*3072}")
    k(f"s_add_u32 s29, s27, {scale_idx*3072}")
    k("v_lshlrev_b32 v10, 4, v2")
    for j in range(3):
        k(f"buffer_load_dwordx4 v[{40+4*j}:{43+4*j}], v10, s[16:19], s28 offen offset:{1024*j}")
    for j in range(3):
        k(f"buffer_load_dwordx4 v[{52+4*j}:{55+4*j}], v10, s[16:19], s29 offen offset:{1024*j}")
    for i, m in enumerate((1, 2, 4, 8, 16, 32)):
        k(f"v_xor_b32 v{64+i}, {m}, v2")
        k(f"v_lshlrev_b32 v{64+i}, 2, v{64+i}")
    k("s_waitcnt vmcnt(6)")
    for j in range(6):
        k(f"v_lshlrev_b32 v{12+2*j}, 16, v{4+j}")
        k(f"v_and_b32 v{13+2*j}, 0xffff0000, v{4+j}")
    k("v_add_f32 v24, v12, v13")
    for j in range(14, 24):
        k(f"v_add_f32 v24, v24, v{j}")
    wave_reduce(k, 24, 25, range(64, 70), "v_add_f32")
    k("v_mul_f32 v24, 0x3aaaaaab, v24")
    k("v_sub_f32 v26, v12, v24")
    k("v_mul_f32 v27, v26, v26")
    for j in range(13, 24):
        k(f"v_sub_f32 v26, v{j}, v24")
        k(f"v_fmac_f32 v27, v26, v26")
    wave_reduce(k, 27, 25, range(64, 70), "v_add_f32")
    k("v_mul_f32 v27, 0x3aaaaaab, v27")
    round_bf16_pair(k, 24, 27, 25)
    k("v_add_f32 v27, 0x3727c5ac, v27")
    k("v_mov_b32 v26, 0")
    round_bf16_pair(k, 27, 26, 25)
    k("v_sqrt_f32 v27, v27")
    k("s_nop 0")
    round_bf16_pair(k, 27, 26, 25)
    k("v_rcp_f32 v27, v27")
    for j in range(12, 24):
        k(f"v_sub_f32 v{j}, v{j}, v24")
    for j in range(12, 24, 2):
        round_bf16_pair(k, j, j + 1, 25)
    for j in range(12, 24):
        k(f"v_mul_f32 v{j}, v{j}, v27")
    for j in range(12, 24, 2):
        round_bf16_pair(k, j, j + 1, 25)
    k("s_waitcnt vmcnt(0)")
    for j in range(12):
        k(f"v_add_f32 v{52+j}, 1.0, v{52+j}")
    for j in range(0, 12, 2):
        round_bf16_pair(k, 52 + j, 53 + j, 25)
    for j in range(12):
        k(f"v_mul_f32 v{12+j}, v{12+j}, v{52+j}")
    for j in range(12, 24, 2):
        round_bf16_pair(k, j, j + 1, 25)
    for j in range(12):
        k(f"v_add_f32 v{12+j}, v{12+j}, v{40+j}")
    for j in range(6):
        k(f"v_cvt_pk_bf16_f32 v{4+j}, v{12+2*j}, v{13+2*j}")
    k("buffer_store_dwordx2 v[4:5], v3, s[20:23], s26 offen")
    k("buffer_store_dwordx2 v[6:7], v3, s[20:23], s26 offen offset:512")
    k("buffer_store_dwordx2 v[8:9], v3, s[20:23], s26 offen offset:1024")
    k("s_waitcnt vmcnt(0)")
    k.label(L)
    return kernel_text(k, 72), f"; @launch kernel={name} grid=(512,1,1) block=(256,1,1) lds=0"


def gen_softmax():
    k = K("dit_softmax_kernel")
    L = k.newlab()
    k("s_cmp_ge_u32 s2, 1024")
    k(f"s_cbranch_scc1 {L}")
    k(f"s_load_dwordx2 s[8:9], s[0:1], {KA_WS}")
    k("v_lshrrev_b32 v1, 6, v0")
    k("v_and_b32 v2, 63, v0")
    k("s_nop 0")
    k("v_readfirstlane_b32 s3, v1")
    k("s_waitcnt lgkmcnt(0)")
    srd(k, 12, 8, 9, WS_S, 4096 * 1024 * 2)
    srd(k, 16, 8, 9, WS_P, 4096 * 1024 * 2)
    k("s_lshl_b32 s24, s2, 2")
    k("s_add_u32 s24, s24, s3")
    k("s_lshl_b32 s26, s24, 11")
    k("v_lshlrev_b32 v3, 4, v2")
    k("buffer_load_dwordx4 v[4:7], v3, s[12:15], s26 offen")
    k("buffer_load_dwordx4 v[8:11], v3, s[12:15], s26 offen offset:1024")
    for i, m in enumerate((1, 2, 4, 8, 16, 32)):
        k(f"v_xor_b32 v{64+i}, {m}, v2")
        k(f"v_lshlrev_b32 v{64+i}, 2, v{64+i}")
    k("s_waitcnt vmcnt(0)")
    for j in range(8):
        k(f"v_lshlrev_b32 v{12+2*j}, 16, v{4+j}")
        k(f"v_and_b32 v{13+2*j}, 0xffff0000, v{4+j}")
    k("v_max_f32 v30, v12, v13")
    for j in range(14, 28):
        k(f"v_max_f32 v30, v30, v{j}")
    wave_reduce(k, 30, 31, range(64, 70), "v_max_f32")
    k("s_mov_b32 s27, 0x3fb8aa3b")
    for j in range(12, 28):
        k(f"v_sub_f32 v{j}, v{j}, v30")
    for j in range(12, 28):
        k(f"v_mul_f32 v{j}, s27, v{j}")
    for j in range(12, 28):
        k(f"v_exp_f32 v{j}, v{j}")
    k("s_nop 0")
    k("v_add_f32 v32, v12, v13")
    for j in range(14, 28):
        k(f"v_add_f32 v32, v32, v{j}")
    wave_reduce(k, 32, 31, range(64, 70), "v_add_f32")
    k("v_rcp_f32 v32, v32")
    k("s_nop 0")
    for j in range(12, 28):
        k(f"v_mul_f32 v{j}, v{j}, v32")
    for j in range(8):
        k(f"v_cvt_pk_bf16_f32 v{4+j}, v{12+2*j}, v{13+2*j}")
    k("buffer_store_dwordx4 v[4:7], v3, s[16:19], s26 offen")
    k("buffer_store_dwordx4 v[8:11], v3, s[16:19], s26 offen offset:1024")
    k("s_waitcnt vmcnt(0)")
    k.label(L)
    return kernel_text(k, 72), "; @launch kernel=dit_softmax_kernel grid=(1024,1,1) block=(256,1,1) lds=0"


class Gemm:
    pass


def gen_gemm(name, BM, BN, K_, nbatch, tiles_m, tiles_n,
             a_src, a_off, a_bstride, lda, a_size,
             b_src, b_off, b_bstride, ldb, b_size, b_layout,
             o_src, o_off, o_bstride, ldo, o_size,
             epi, gate_idx=None, res_src=None, res_off=0, S=4):
    k = K(name)
    WM, WN = BM // 2, BN // 2
    MT, NT = WM // 16, WN // 16
    nsteps = K_ // 64
    NA = BM // 32
    NB = BN // 32
    NL = NA + NB
    A_BYTES = BM * 128
    R = BN * 2
    B_BYTES = BN * 128
    STG = A_BYTES + B_BYTES
    assert S * STG <= 163840, S * STG
    nwg = nbatch * tiles_m * tiles_n
    L = k.newlab()
    k(f"s_cmp_ge_u32 s2, {nwg}")
    k(f"s_cbranch_scc1 {L}")
    k(f"s_load_dwordx2 s[4:5], s[0:1], {a_src}")
    k(f"s_load_dwordx2 s[6:7], s[0:1], {b_src}")
    k(f"s_load_dwordx2 s[8:9], s[0:1], {o_src}")
    k(f"s_load_dwordx2 s[10:11], s[0:1], {KA_WS}")
    if res_src is not None:
        k(f"s_load_dwordx2 s[40:41], s[0:1], {res_src}")
    def divmod_const(dst_q, dst_r, src, d):
        magic = (1 << 32) // d + 1
        k(f"s_mul_hi_u32 s{dst_q}, s{src}, {magic}")
        k(f"s_mul_i32 s{dst_r}, s{dst_q}, {d}")
        k(f"s_sub_u32 s{dst_r}, s{src}, s{dst_r}")
    k("s_and_b32 s54, s2, 7")
    k(f"s_mul_i32 s54, s54, {nwg//8}")
    k("s_lshr_b32 s55, s2, 3")
    k("s_add_u32 s54, s54, s55")
    divmod_const(30, 31, 54, tiles_n)
    divmod_const(32, 33, 30, tiles_m)
    k("v_lshrrev_b32 v1, 6, v0")
    k("v_and_b32 v2, 63, v0")
    k("s_nop 0")
    k("v_readfirstlane_b32 s3, v1")
    k("v_and_b32 v1, 3, v1")
    k("s_lshr_b32 s53, s3, 2")
    k("s_and_b32 s3, s3, 3")
    k("s_waitcnt lgkmcnt(0)")
    k(f"s_mul_i32 s34, s32, {a_bstride}")
    k(f"s_add_u32 s34, s34, {a_off}")
    srd_s(k, 12, 4, 5, 34, a_size)
    k(f"s_mul_i32 s34, s32, {b_bstride}")
    k(f"s_add_u32 s34, s34, {b_off}")
    srd_s(k, 16, 6, 7, 34, b_size)
    k(f"s_mul_i32 s34, s32, {o_bstride}")
    k(f"s_add_u32 s34, s34, {o_off}")
    srd_s(k, 20, 8, 9, 34, o_size)
    srd(k, 24, 10, 11, WS_MOD, 2 * 4608 * 4)
    if res_src is not None:
        srd(k, 44, 40, 41, res_off, 2048 * 768 * 2)
    vAg = 4
    vBg = list(range(5, 5 + NB))
    vAr = [11, 12]
    vBr = list(range(13, 13 + max(NT, 2)))
    vAc = [19, 20]
    vBc = list(range(21, 21 + max(NT, 2)))
    vT = [27, 28, 29, 30, 31, 32, 33]
    ep = 34
    frA = 72
    frB = frA + 2 * MT * 4
    acc = frB + 2 * NT * 4
    nv = acc + MT * NT * 4
    assert nv <= 256, nv
    t0, t1, t2, t3 = vT[0], vT[1], vT[2], vT[3]
    def fk(dst, kreg, tmp):
        k(f"v_bfe_u32 v{tmp}, v{kreg}, 3, 1")
        if (BN // 16) % 4 == 0:
            k(f"v_bfe_u32 v{dst}, v{kreg}, 1, 1")
            k(f"v_lshl_or_b32 v{dst}, v{tmp}, 1, v{dst}")
        else:
            k(f"v_mov_b32 v{dst}, v{tmp}")
    k(f"v_lshrrev_b32 v{t0}, 3, v2")
    k(f"v_and_b32 v{t1}, 7, v2")
    k(f"v_xor_b32 v{t1}, v{t1}, v{t0}")
    k(f"s_mul_i32 s35, s33, {BM}")
    k(f"s_lshl_b32 s36, s3, 3")
    k(f"s_add_u32 s35, s35, s36")
    k(f"v_add_u32 v{t2}, s35, v{t0}")
    k(f"s_mov_b32 s36, {lda*2}")
    k(f"v_mul_lo_u32 v{t2}, v{t2}, s36")
    k(f"v_lshl_add_u32 v{vAg}, v{t1}, 4, v{t2}")
    if b_layout == "NT":
        k(f"s_mul_i32 s35, s31, {BN}")
        k(f"s_lshl_b32 s36, s3, 3")
        k(f"s_add_u32 s35, s35, s36")
        k(f"v_add_u32 v{t2}, s35, v{t0}")
        k(f"s_mov_b32 s36, {ldb*2}")
        k(f"v_mul_lo_u32 v{t2}, v{t2}, s36")
        k(f"v_lshl_add_u32 v{vBg[0]}, v{t1}, 4, v{t2}")
    else:
        CPR = R // 16
        magic = (1 << 32) // CPR + 1
        k(f"s_mov_b32 s36, {magic}")
        k(f"s_mul_i32 s35, s31, {BN*2}")
        k(f"s_mov_b32 s37, {ldb*2}")
        for i in range(NB):
            k(f"s_lshl_b32 s43, s3, 6")
            k(f"v_add_u32 v{t2}, s43, v2")
            k(f"v_add_u32 v{t2}, {256*i}, v{t2}")
            k(f"v_mul_hi_u32 v{t3}, v{t2}, s36")
            k(f"v_mul_u32_u24 v{vT[4]}, {CPR}, v{t3}")
            k(f"v_sub_u32 v{vT[4]}, v{t2}, v{vT[4]}")
            fk(vT[5], t3, vT[6])
            k(f"v_lshrrev_b32 v{vT[6]}, 1, v{vT[4]}")
            k(f"v_xor_b32 v{vT[6]}, v{vT[6]}, v{vT[5]}")
            k(f"v_and_b32 v{vT[4]}, 1, v{vT[4]}")
            k(f"v_lshl_or_b32 v{vT[4]}, v{vT[6]}, 1, v{vT[4]}")
            k(f"v_mul_lo_u32 v{vT[5]}, v{t3}, s37")
            k(f"v_lshl_add_u32 v{vT[5]}, v{vT[4]}, 4, v{vT[5]}")
            k(f"v_add_u32 v{vBg[i]}, s35, v{vT[5]}")
    k("v_lshrrev_b32 v{0}, 1, v1".format(t0))
    k("v_and_b32 v{0}, 1, v1".format(t1))
    k(f"v_and_b32 v{t2}, 15, v2")
    k(f"v_lshrrev_b32 v{t3}, 4, v2")
    k(f"v_mul_u32_u24 v{vT[4]}, {WM}, v{t0}")
    k(f"v_add_u32 v{vT[4]}, v{vT[4]}, v{t2}")
    k(f"v_and_b32 v{vT[5]}, 7, v2")
    k(f"v_xor_b32 v{vT[5]}, v{vT[5]}, v{t3}")
    k(f"v_lshlrev_b32 v{vT[5]}, 4, v{vT[5]}")
    k(f"v_lshl_add_u32 v{vAr[0]}, v{vT[4]}, 7, v{vT[5]}")
    k(f"v_xor_b32 v{vAr[1]}, 64, v{vAr[0]}")
    if b_layout == "NT":
        k(f"v_mul_u32_u24 v{vT[4]}, {WN}, v{t1}")
        k(f"v_add_u32 v{vT[4]}, v{vT[4]}, v{t2}")
        k(f"v_lshl_add_u32 v{vBr[0]}, v{vT[4]}, 7, v{vT[5]}")
        k(f"v_add_u32 v{vBr[0]}, {A_BYTES}, v{vBr[0]}")
        k(f"v_xor_b32 v{vBr[1]}, 64, v{vBr[0]}")
        nBr = 2
    else:
        k(f"v_lshrrev_b32 v{vT[4]}, 2, v{t2}")
        k(f"v_lshl_add_u32 v{vT[4]}, v{t3}, 3, v{vT[4]}")
        fk(vT[5], vT[4], vT[6])
        k(f"v_mul_u32_u24 v{vT[4]}, {R}, v{vT[4]}")
        k(f"v_and_b32 v{vT[6]}, 3, v2")
        k(f"v_lshl_add_u32 v{vT[4]}, v{vT[6]}, 3, v{vT[4]}")
        k(f"v_add_u32 v{vT[4]}, {A_BYTES}, v{vT[4]}")
        for j in range(NT):
            k(f"v_mul_u32_u24 v{vT[6]}, {NT}, v{t1}")
            k(f"v_add_u32 v{vT[6]}, {j}, v{vT[6]}")
            k(f"v_xor_b32 v{vT[6]}, v{vT[6]}, v{vT[5]}")
            k(f"v_lshl_add_u32 v{vBr[j]}, v{vT[6]}, 5, v{vT[4]}")
        nBr = NT
    for i in range(MT * NT * 4):
        k(f"v_mov_b32 v{acc+i}, 0")
    k("s_mov_b32 s38, 0")
    k("s_mov_b32 s39, 0")
    k("s_lshl_b32 s48, s3, 10")
    k("s_mov_b32 s49, s48")
    k("s_mov_b32 s50, 0")
    bstep = 64 * ldb * 2 if b_layout == "NN" else 128

    def dma():
        for i in range(NA):
            k(f"s_add_u32 m0, s49, {4096*i}")
            k(f"s_add_u32 s51, s38, {32*i*lda*2}")
            k(f"buffer_load_dwordx4 v{vAg}, s[12:15], s51 offen lds")
        for i in range(NB):
            k(f"s_add_u32 m0, s49, {A_BYTES + 4096*i}")
            if b_layout == "NT":
                k(f"s_add_u32 s51, s39, {32*i*ldb*2}")
                k(f"buffer_load_dwordx4 v{vBg[0]}, s[16:19], s51 offen lds")
            else:
                k("s_nop 0")
                k(f"buffer_load_dwordx4 v{vBg[i]}, s[16:19], s39 offen lds")
        k("s_add_u32 s38, s38, 128")
        k(f"s_add_u32 s39, s39, {bstep}")
        k(f"s_add_u32 s49, s49, {STG}")
        k(f"s_sub_u32 s51, s49, s48")
        k(f"s_cmp_ge_u32 s51, {S*STG}")
        k(f"s_cselect_b32 s49, s48, s49")

    def compute():
        for i in range(2):
            k(f"v_add_u32 v{vAc[i]}, s50, v{vAr[i]}")
        for j in range(nBr):
            k(f"v_add_u32 v{vBc[j]}, s50, v{vBr[j]}")
        cnt = []
        for kk in range(2):
            n = 0
            for i in range(MT):
                r = frA + (kk * MT + i) * 4
                k(f"ds_read_b128 v[{r}:{r+3}], v{vAc[kk]} offset:{2048*i}")
                n += 1
            for j in range(NT):
                r = frB + (kk * NT + j) * 4
                if b_layout == "NT":
                    k(f"ds_read_b128 v[{r}:{r+3}], v{vBc[kk]} offset:{2048*j}")
                    n += 1
                else:
                    o = kk * 32 * R
                    k(f"ds_read_b64_tr_b16 v[{r}:{r+1}], v{vBc[j]} offset:{o}")
                    k(f"ds_read_b64_tr_b16 v[{r+2}:{r+3}], v{vBc[j]} offset:{o+4*R}")
                    n += 2
            cnt.append(n)
        for kk in range(2):
            k(f"s_waitcnt lgkmcnt({min(cnt[1],15) if kk == 0 else 0})")
            for i in range(MT):
                for j in range(NT):
                    a = frA + (kk * MT + i) * 4
                    b = frB + (kk * NT + j) * 4
                    c = acc + (i * NT + j) * 4
                    k(f"v_mfma_f32_16x16x32_bf16 v[{c}:{c+3}], v[{b}:{b+3}], v[{a}:{a+3}], v[{c}:{c+3}]")
        k(f"s_add_u32 s50, s50, {STG}")
        k(f"s_cmp_ge_u32 s50, {S*STG}")
        k(f"s_cselect_b32 s50, 0, s50")

    nmain = nsteps - (S - 1)
    assert nmain >= 1
    k(f"s_mov_b32 s42, {nmain}")
    Lc = k.newlab()
    k("s_cmp_eq_u32 s53, 0")
    k(f"s_cbranch_scc1 {Lc}")
    for s in range(S - 1):
        dma()
    Lp = k.newlab()
    k.label(Lp)
    k(f"s_waitcnt vmcnt({(S-2)*NL})")
    k("s_barrier")
    dma()
    k("s_sub_u32 s42, s42, 1")
    k("s_cmp_lg_u32 s42, 0")
    k(f"s_cbranch_scc1 {Lp}")
    for tl in range(S - 1):
        k(f"s_waitcnt vmcnt({(S-2-tl)*NL})")
        k("s_barrier")
    k("s_barrier")
    k(f"s_branch {L}")
    k.label(Lc)
    k(f"s_mov_b32 s42, {nsteps}")
    Lq = k.newlab()
    k.label(Lq)
    k("s_barrier")
    compute()
    k("s_sub_u32 s42, s42, 1")
    k("s_cmp_lg_u32 s42, 0")
    k(f"s_cbranch_scc1 {Lq}")
    vO = vT[4]
    k(f"s_mul_i32 s35, s33, {BM}")
    k(f"v_mul_u32_u24 v{vT[5]}, {WM}, v{t0}")
    k(f"v_add3_u32 v{vT[5]}, v{vT[5]}, v{t2}, s35")
    k(f"s_mul_i32 s36, s31, {BN}")
    k(f"v_mul_u32_u24 v{vT[6]}, {WN}, v{t1}")
    k(f"v_lshl_add_u32 v{vT[6]}, v{t3}, 2, v{vT[6]}")
    k(f"v_add_u32 v{vT[6]}, s36, v{vT[6]}")
    k(f"s_mov_b32 s37, {ldo*2}")
    k(f"v_mul_lo_u32 v{vO}, v{vT[5]}, s37")
    k(f"v_lshl_add_u32 v{vO}, v{vT[6]}, 1, v{vO}")
    e0 = ep
    ORS = WN * 2 + 16
    vLw = 35 + 36
    k("s_barrier")
    k(f"s_mul_i32 s52, s3, {WM*ORS}")
    k(f"v_mul_u32_u24 v{vLw}, {ORS}, v{t2}")
    k(f"v_lshl_add_u32 v{vLw}, v{t3}, 3, v{vLw}")
    k(f"v_add_u32 v{vLw}, s52, v{vLw}")
    if epi == "gateres":
        k(f"s_lshr_b32 s37, s35, 10")
        k(f"s_mul_i32 s37, s37, 18432")
        k(f"s_add_u32 s37, s37, {gate_idx*3072}")
        k(f"v_lshlrev_b32 v{vT[6]}, 2, v{vT[6]}")
        for j in range(NT):
            k(f"buffer_load_dwordx4 v[{e0+4*j}:{e0+4*j+3}], v{vT[6]}, s[24:27], s37 offen offset:{64*j}")
    k("s_nop 7")
    k("s_nop 7")
    g0 = e0
    r0 = e0 + 4 * NT
    for i in range(MT):
        if epi == "gateres":
            for j in range(NT):
                k(f"buffer_load_dwordx2 v[{r0+2*j}:{r0+2*j+1}], v{vO}, s[44:47], 0 offen offset:{32*j}")
            k("s_waitcnt vmcnt(0)")
        for j in range(NT):
            c = acc + (i * NT + j) * 4
            if epi == "plain":
                pass
            elif epi == "sscale":
                round_bf16_pair(k, c, c + 1, vT[5])
                round_bf16_pair(k, c + 2, c + 3, vT[5])
                for q in range(4):
                    k(f"v_mul_f32 v{c+q}, 0x3d5105ec, v{c+q}")
            elif epi == "gelu":
                round_bf16_pair(k, c, c + 1, vT[5])
                round_bf16_pair(k, c + 2, c + 3, vT[5])
                for q in range(4):
                    x = c + q
                    tt = r0 + q
                    k(f"v_mul_f32 v{tt}, v{x}, v{x}")
                    k(f"v_mul_f32 v{tt}, 0x3d372713, v{tt}")
                    k(f"v_add_f32 v{tt}, 1.0, v{tt}")
                    k(f"v_mul_f32 v{tt}, v{tt}, v{x}")
                    k(f"v_mul_f32 v{tt}, 0xc0135761, v{tt}")
                for q in range(4):
                    k(f"v_exp_f32 v{r0+q}, v{r0+q}")
                k("s_nop 0")
                for q in range(4):
                    k(f"v_add_f32 v{r0+q}, 1.0, v{r0+q}")
                for q in range(4):
                    k(f"v_rcp_f32 v{r0+q}, v{r0+q}")
                k("s_nop 0")
                for q in range(4):
                    k(f"v_mul_f32 v{c+q}, v{c+q}, v{r0+q}")
            elif epi == "gateres":
                round_bf16_pair(k, c, c + 1, vT[5])
                round_bf16_pair(k, c + 2, c + 3, vT[5])
                for q in range(4):
                    k(f"v_mul_f32 v{c+q}, v{c+q}, v{g0+4*j+q}")
                round_bf16_pair(k, c, c + 1, vT[5])
                round_bf16_pair(k, c + 2, c + 3, vT[5])
                ra = r0 + 2 * j
                k(f"v_lshlrev_b32 v{vT[5]}, 16, v{ra}")
                k(f"v_add_f32 v{c}, v{c}, v{vT[5]}")
                k(f"v_and_b32 v{vT[5]}, 0xffff0000, v{ra}")
                k(f"v_add_f32 v{c+1}, v{c+1}, v{vT[5]}")
                k(f"v_lshlrev_b32 v{vT[5]}, 16, v{ra+1}")
                k(f"v_add_f32 v{c+2}, v{c+2}, v{vT[5]}")
                k(f"v_and_b32 v{vT[5]}, 0xffff0000, v{ra+1}")
                k(f"v_add_f32 v{c+3}, v{c+3}, v{vT[5]}")
            k(f"v_cvt_pk_bf16_f32 v{c}, v{c}, v{c+1}")
            k(f"v_cvt_pk_bf16_f32 v{c+1}, v{c+2}, v{c+3}")
            k(f"ds_write_b64 v{vLw}, v[{c}:{c+1}] offset:{16*i*ORS + 32*j}")
        if i + 1 < MT and epi == "gateres":
            k(f"v_add_u32 v{vO}, {16*ldo*2}, v{vO}")
    k("s_waitcnt lgkmcnt(0)")
    CW = WN * 2 // 16
    nit = WM * CW // 64
    magic = (1 << 32) // CW + 1
    k(f"s_mov_b32 s36, {magic}")
    k(f"s_mul_i32 s35, s33, {BM}")
    k(f"s_lshr_b32 s37, s3, 1")
    k(f"s_mul_i32 s37, s37, {WM}")
    k(f"s_add_u32 s35, s35, s37")
    k(f"s_mul_i32 s35, s35, {ldo*2}")
    k(f"s_mul_i32 s37, s31, {BN*2}")
    k(f"s_add_u32 s35, s35, s37")
    k(f"s_and_b32 s37, s3, 1")
    k(f"s_mul_i32 s37, s37, {WN*2}")
    k(f"s_add_u32 s35, s35, s37")
    k(f"s_mov_b32 s37, {ldo*2}")
    for it in range(nit):
        q, rr, cc, la, ga = vT[0], vT[1], vT[2], vT[3], vT[5]
        k(f"v_add_u32 v{q}, {64*it}, v2")
        k(f"v_mul_hi_u32 v{rr}, v{q}, s36")
        k(f"v_mul_u32_u24 v{cc}, {CW}, v{rr}")
        k(f"v_sub_u32 v{cc}, v{q}, v{cc}")
        k(f"v_mul_u32_u24 v{la}, {ORS}, v{rr}")
        k(f"v_lshl_add_u32 v{la}, v{cc}, 4, v{la}")
        k(f"v_add_u32 v{la}, s52, v{la}")
        d = acc + 4 * (it % 8)
        k(f"ds_read_b128 v[{d}:{d+3}], v{la}")
        k(f"v_mul_lo_u32 v{ga}, v{rr}, s37")
        k(f"v_lshl_add_u32 v{ep+(it%8)}, v{cc}, 4, v{ga}")
        k("s_waitcnt lgkmcnt(0)")
        k(f"buffer_store_dwordx4 v[{d}:{d+3}], v{ep+(it%8)}, s[20:23], s35 offen")
    k("s_waitcnt vmcnt(0)")
    k.label(L)
    return kernel_text(k, nv), f"; @launch kernel={name} grid=({nwg},1,1) block=(512,1,1) lds={S*STG}"


def main():
    parts = []
    parts.append(gen_mod())
    parts.append(gen_ln("dit_ln1_kernel", True, 0, 1, WS_H))
    parts.append(gen_gemm("dit_qkv_kernel", 128, 192, 768, 1, 16, 12,
                          KA_WS, WS_H, 0, 768, 2048 * 768 * 2,
                          KA_WQKV, 0, 0, 2304, 768 * 2304 * 2, "NN",
                          KA_WS, WS_QKV, 0, 2304, 2048 * 2304 * 2, "plain"))
    parts.append(gen_gemm_bh("dit_s_kernel", "S"))
    parts.append(gen_softmax())
    parts.append(gen_gemm_bh("dit_pv_kernel", "PV"))
    parts.append(gen_gemm("dit_wo_kernel", 64, 96, 768, 1, 32, 8,
                          KA_WS, WS_AO, 0, 768, 2048 * 768 * 2,
                          KA_WO, 0, 0, 768, 768 * 768 * 2, "NN",
                          KA_WS, WS_X2, 0, 768, 2048 * 768 * 2, "gateres", gate_idx=2, res_src=KA_X, res_off=0, S=7))
    parts.append(gen_ln("dit_ln2_kernel", False, 3, 4, WS_H2))
    parts.append(gen_gemm("dit_fc1_kernel", 128, 192, 768, 1, 16, 16,
                          KA_WS, WS_H2, 0, 768, 2048 * 768 * 2,
                          KA_FC1, 0, 0, 3072, 768 * 3072 * 2, "NN",
                          KA_WS, WS_G, 0, 3072, 2048 * 3072 * 2, "gelu"))
    parts.append(gen_gemm("dit_fc2_kernel", 64, 96, 3072, 1, 32, 8,
                          KA_WS, WS_G, 0, 3072, 2048 * 3072 * 2,
                          KA_FC2, 0, 0, 768, 3072 * 768 * 2, "NN",
                          KA_OUT, 0, 0, 768, 2048 * 768 * 2, "gateres", gate_idx=5, res_src=KA_WS, res_off=WS_X2, S=7))
    hdr = open("standalone__dit_block__diffusion.s.ref").read().split("; Override launch")[0]
    out = hdr
    for _, l in parts:
        out += l + "\n"
    out += '.amdgcn_target "amdgcn-amd-amdhsa--gfx950"\n'
    for t, _ in parts:
        out += t
    open(sys.argv[1] if len(sys.argv) > 1 else "standalone__dit_block__diffusion.s", "w").write(out)


def gen_gemm_bh(name, kind):
    if kind == "S":
        return gen_gemm_bh_impl(name, 128, 128, 384, 8, 8,
                                a=(WS_QKV, 2304), b=(WS_QKV + 768 * 2, 2304), layout="NT",
                                o=(WS_S, 1024 * 1024 * 2, 1024), epi="sscale", a_is_qkv=True)
    else:
        return gen_gemm_bh_impl(name, 64, 96, 1024, 16, 4,
                                a=(WS_P, 1024), b=(WS_QKV + 1536 * 2, 2304), layout="NN",
                                o=(WS_AO, None, 768), epi="plain", a_is_qkv=False)


def gen_gemm_bh_impl(name, BM, BN, K_, tiles_m, tiles_n, a, b, layout, o, epi, a_is_qkv):
    text, launch = gen_gemm(name, BM, BN, K_, 4, tiles_m, tiles_n,
                            KA_WS, a[0], 111111 if a_is_qkv else 1024 * 1024 * 2, a[1],
                            (2048 * 2304 * 2) if a_is_qkv else 4096 * 1024 * 2,
                            KA_WS, b[0], 111111, b[1], 2048 * 2304 * 2, layout,
                            KA_WS, o[0], o[1] if o[1] is not None else 222222, o[2],
                            4096 * 1024 * 2 if o[1] is not None else 2048 * 768 * 2, epi, S=(4 if a_is_qkv else 7))
    qkv_off = ("    s_lshr_b32 s34, s32, 1\n    s_mul_i32 s34, s34, 4718592\n"
               "    s_and_b32 s43, s32, 1\n    s_mul_i32 s43, s43, 768\n    s_add_u32 s34, s34, s43\n")
    text = text.replace("    s_mul_i32 s34, s32, 111111\n", qkv_off)
    ao_off = ("    s_lshr_b32 s34, s32, 1\n    s_mul_i32 s34, s34, 1572864\n"
              "    s_and_b32 s43, s32, 1\n    s_mul_i32 s43, s43, 768\n    s_add_u32 s34, s34, s43\n")
    text = text.replace("    s_mul_i32 s34, s32, 222222\n", ao_off)
    return text, launch


if __name__ == "__main__":
    main()
```

```python
import sys

WS_MOD = 0x0
WS_H   = 0x100000
WS_QKV = 0x400000
WS_S   = 0x1000000
WS_P   = 0x1800000
WS_AO  = 0x2000000
WS_X2  = 0x2400000
WS_H2  = 0x2800000
WS_G   = 0x2C00000

KA_X, KA_C, KA_WQKV, KA_WO, KA_WMOD, KA_FC1, KA_FC2, KA_OUT, KA_DBG, KA_WS = [8 * i for i in range(10)]


class K:
    def __init__(self, name):
        self.name = name
        self.lines = []
        self.vmax = 0
        self.lab = 0

    def __call__(self, s):
        self.lines.append("    " + s)

    def label(self, l):
        self.lines.append(l + ":")

    def newlab(self, p="L"):
        self.lab += 1
        return f"{p}_{self.name}_{self.lab}"


def kernel_text(k, nvgpr, nsgpr=100):
    nv = ((nvgpr + 7) // 8) * 8
    acc = ((nvgpr + 3) // 4) * 4
    out = []
    out.append(".text")
    out.append(f".globl {k.name}")
    out.append(".p2align 8")
    out.append(f".type {k.name},@function")
    out.append(f"{k.name}:")
    out += k.lines
    out.append("    s_endpgm")
    out.append('.section .rodata,"a"')
    out.append(".p2align 6")
    out.append(f".amdhsa_kernel {k.name}")
    out.append(f"  .amdhsa_next_free_vgpr {nv}")
    out.append(f"  .amdhsa_next_free_sgpr {nsgpr}")
    out.append(f"  .amdhsa_accum_offset {acc}")
    out.append("  .amdhsa_group_segment_fixed_size 0")
    out.append("  .amdhsa_kernarg_size 80")
    out.append("  .amdhsa_user_sgpr_count 2")
    out.append("  .amdhsa_user_sgpr_kernarg_segment_ptr 1")
    out.append("  .amdhsa_system_sgpr_workgroup_id_x 1")
    out.append(".end_amdhsa_kernel")
    return "\n".join(out) + "\n"


def srd(k, d, base_lo, base_hi, off, size):
    if off:
        k(f"s_add_u32 s{d}, s{base_lo}, {off}")
        k(f"s_addc_u32 s{d+1}, s{base_hi}, 0")
    else:
        k(f"s_mov_b32 s{d}, s{base_lo}")
        k(f"s_mov_b32 s{d+1}, s{base_hi}")
    k(f"s_mov_b32 s{d+2}, {size}")
    k(f"s_mov_b32 s{d+3}, 0x00020000")


def srd_s(k, d, base_lo, base_hi, soff, size):
    k(f"s_add_u32 s{d}, s{base_lo}, s{soff}")
    k(f"s_addc_u32 s{d+1}, s{base_hi}, 0")
    k(f"s_mov_b32 s{d+2}, {size}")
    k(f"s_mov_b32 s{d+3}, 0x00020000")


def round_bf16_pair(k, a, b, tmp):
    k(f"v_cvt_pk_bf16_f32 v{tmp}, v{a}, v{b}")
    k(f"v_lshlrev_b32 v{a}, 16, v{tmp}")
    k(f"v_and_b32 v{b}, 0xffff0000, v{tmp}")


def wave_reduce(k, v, tmp, addr, op):
    for a in addr:
        k(f"ds_bpermute_b32 v{tmp}, v{a}, v{v}")
        k("s_waitcnt lgkmcnt(0)")
        k(f"{op} v{v}, v{v}, v{tmp}")


def ln_row(k, shift_idx, scale_idx):
    k("s_lshr_b32 s25, s24, 10")
    k("s_mul_i32 s26, s24, 1536")
    k("v_lshlrev_b32 v3, 3, v2")
    k("buffer_load_dwordx2 v[4:5], v3, s[12:15], s26 offen")
    k("buffer_load_dwordx2 v[6:7], v3, s[12:15], s26 offen offset:512")
    k("buffer_load_dwordx2 v[8:9], v3, s[12:15], s26 offen offset:1024")
    k("s_mul_i32 s27, s25, 18432")
    k(f"s_add_u32 s28, s27, {shift_idx*3072}")
    k(f"s_add_u32 s29, s27, {scale_idx*3072}")
    k("v_lshlrev_b32 v10, 4, v2")
    for j in range(3):
        k(f"buffer_load_dwordx4 v[{40+4*j}:{43+4*j}], v10, s[16:19], s28 offen offset:{1024*j}")
    for j in range(3):
        k(f"buffer_load_dwordx4 v[{52+4*j}:{55+4*j}], v10, s[16:19], s29 offen offset:{1024*j}")
    for i, m in enumerate((1, 2, 4, 8, 16, 32)):
        k(f"v_xor_b32 v{64+i}, {m}, v2")
        k(f"v_lshlrev_b32 v{64+i}, 2, v{64+i}")
    k("s_waitcnt vmcnt(6)")
    for j in range(6):
        k(f"v_lshlrev_b32 v{12+2*j}, 16, v{4+j}")
        k(f"v_and_b32 v{13+2*j}, 0xffff0000, v{4+j}")
    k("v_add_f32 v24, v12, v13")
    for j in range(14, 24):
        k(f"v_add_f32 v24, v24, v{j}")
    wave_reduce(k, 24, 25, range(64, 70), "v_add_f32")
    k("v_mul_f32 v24, 0x3aaaaaab, v24")
    k("v_sub_f32 v26, v12, v24")
    k("v_mul_f32 v27, v26, v26")
    for j in range(13, 24):
        k(f"v_sub_f32 v26, v{j}, v24")
        k(f"v_fmac_f32 v27, v26, v26")
    wave_reduce(k, 27, 25, range(64, 70), "v_add_f32")
    k("v_mul_f32 v27, 0x3aaaaaab, v27")
    round_bf16_pair(k, 24, 27, 25)
    k("v_add_f32 v27, 0x3727c5ac, v27")
    k("v_mov_b32 v26, 0")
    round_bf16_pair(k, 27, 26, 25)
    k("v_sqrt_f32 v27, v27")
    k("s_nop 0")
    round_bf16_pair(k, 27, 26, 25)
    k("v_rcp_f32 v27, v27")
    for j in range(12, 24):
        k(f"v_sub_f32 v{j}, v{j}, v24")
    for j in range(12, 24, 2):
        round_bf16_pair(k, j, j + 1, 25)
    for j in range(12, 24):
        k(f"v_mul_f32 v{j}, v{j}, v27")
    for j in range(12, 24, 2):
        round_bf16_pair(k, j, j + 1, 25)
    k("s_waitcnt vmcnt(0)")
    for j in range(12):
        k(f"v_add_f32 v{52+j}, 1.0, v{52+j}")
    for j in range(0, 12, 2):
        round_bf16_pair(k, 52 + j, 53 + j, 25)
    for j in range(12):
        k(f"v_mul_f32 v{12+j}, v{12+j}, v{52+j}")
    for j in range(12, 24, 2):
        round_bf16_pair(k, j, j + 1, 25)
    for j in range(12):
        k(f"v_add_f32 v{12+j}, v{12+j}, v{40+j}")
    for j in range(6):
        k(f"v_cvt_pk_bf16_f32 v{4+j}, v{12+2*j}, v{13+2*j}")
    k("buffer_store_dwordx2 v[4:5], v3, s[20:23], s26 offen")
    k("buffer_store_dwordx2 v[6:7], v3, s[20:23], s26 offen offset:512")
    k("buffer_store_dwordx2 v[8:9], v3, s[20:23], s26 offen offset:1024")
    k("s_waitcnt vmcnt(0)")


def sm_row(k):
    k("s_lshl_b32 s26, s24, 11")
    k("v_lshlrev_b32 v3, 4, v2")
    k("buffer_load_dwordx4 v[4:7], v3, s[12:15], s26 offen")
    k("buffer_load_dwordx4 v[8:11], v3, s[12:15], s26 offen offset:1024")
    for i, m in enumerate((1, 2, 4, 8, 16, 32)):
        k(f"v_xor_b32 v{64+i}, {m}, v2")
        k(f"v_lshlrev_b32 v{64+i}, 2, v{64+i}")
    k("s_waitcnt vmcnt(0)")
    for j in range(8):
        k(f"v_lshlrev_b32 v{12+2*j}, 16, v{4+j}")
        k(f"v_and_b32 v{13+2*j}, 0xffff0000, v{4+j}")
    k("v_max_f32 v30, v12, v13")
    for j in range(14, 28):
        k(f"v_max_f32 v30, v30, v{j}")
    wave_reduce(k, 30, 31, range(64, 70), "v_max_f32")
    k("s_mov_b32 s27, 0x3fb8aa3b")
    for j in range(12, 28):
        k(f"v_sub_f32 v{j}, v{j}, v30")
    for j in range(12, 28):
        k(f"v_mul_f32 v{j}, s27, v{j}")
    for j in range(12, 28):
        k(f"v_exp_f32 v{j}, v{j}")
    k("s_nop 0")
    k("v_add_f32 v32, v12, v13")
    for j in range(14, 28):
        k(f"v_add_f32 v32, v32, v{j}")
    wave_reduce(k, 32, 31, range(64, 70), "v_add_f32")
    k("v_rcp_f32 v32, v32")
    k("s_nop 0")
    for j in range(12, 28):
        k(f"v_mul_f32 v{j}, v{j}, v32")
    for j in range(8):
        k(f"v_cvt_pk_bf16_f32 v{4+j}, v{12+2*j}, v{13+2*j}")
    k("buffer_store_dwordx4 v[4:7], v3, s[16:19], s26 offen")
    k("buffer_store_dwordx4 v[8:11], v3, s[16:19], s26 offen offset:1024")
    k("s_waitcnt vmcnt(0)")


def gen_mod():
    k = K("dit_mod_kernel")
    k("s_cmp_ge_u32 s2, 36")
    L = k.newlab()
    k(f"s_cbranch_scc1 {L}")
    k(f"s_load_dwordx2 s[4:5], s[0:1], {KA_C}")
    k(f"s_load_dwordx2 s[6:7], s[0:1], {KA_WMOD}")
    k(f"s_load_dwordx2 s[8:9], s[0:1], {KA_WS}")
    k("v_lshrrev_b32 v1, 6, v0")
    k("v_and_b32 v2, 63, v0")
    k("s_nop 0")
    k("v_readfirstlane_b32 s3, v1")
    k("s_waitcnt lgkmcnt(0)")
    srd(k, 12, 4, 5, 0, 2 * 768 * 2)
    srd(k, 16, 6, 7, 0, 768 * 4608 * 2)
    srd(k, 20, 8, 9, WS_MOD, 2 * 4608 * 4)
    k("s_mul_i32 s24, s3, 96")
    k("v_add_u32 v3, s24, v2")
    k("v_lshlrev_b32 v3, 1, v3")
    k("buffer_load_ushort v4, v3, s[12:15], 0 offen")
    k("buffer_load_ushort v5, v3, s[12:15], 0 offen offset:128")
    k("buffer_load_ushort v6, v3, s[12:15], 0 offen offset:1536")
    k("buffer_load_ushort v7, v3, s[12:15], 0 offen offset:1664")
    k("s_waitcnt vmcnt(0)")
    for r in (4, 5, 6, 7):
        k(f"v_lshlrev_b32 v{r}, 16, v{r}")
    k("s_mov_b32 s25, 0xbfb8aa3b")
    for r in (4, 5, 6, 7):
        k(f"v_mul_f32 v{r+4}, s25, v{r}")
    for r in (4, 5, 6, 7):
        k(f"v_exp_f32 v{r+4}, v{r+4}")
    k("s_nop 0")
    for r in (4, 5, 6, 7):
        k(f"v_add_f32 v{r+4}, 1.0, v{r+4}")
    for r in (4, 5, 6, 7):
        k(f"v_rcp_f32 v{r+4}, v{r+4}")
    k("s_nop 0")
    for r in (4, 5, 6, 7):
        k(f"v_mul_f32 v{r}, v{r}, v{r+4}")
    round_bf16_pair(k, 4, 5, 12)
    round_bf16_pair(k, 6, 7, 12)
    k("s_lshl_b32 s26, s2, 8")
    k("s_mul_i32 s27, s24, 9216")
    k("s_add_u32 s26, s26, s27")
    k("v_lshlrev_b32 v13, 2, v2")
    k("v_add_u32 v13, s26, v13")
    for r in (14, 15, 16, 17):
        k(f"v_mov_b32 v{r}, 0")
    k("s_mov_b32 s28, 0")
    for bt in range(6):
        for i in range(16):
            kk = bt * 16 + i
            k(f"buffer_load_dword v{32+i}, v13, s[16:19], s28 offen")
            k("s_add_u32 s28, s28, 9216")
        for i in range(16):
            kk = bt * 16 + i
            ra, rb = (4, 6) if kk < 64 else (5, 7)
            ln = kk % 64
            k(f"v_readlane_b32 s30, v{ra}, {ln}")
            k(f"v_readlane_b32 s31, v{rb}, {ln}")
            k(f"s_waitcnt vmcnt({15-i})")
            k(f"v_lshlrev_b32 v18, 16, v{32+i}")
            k(f"v_and_b32 v19, 0xffff0000, v{32+i}")
            k(f"v_fma_f32 v14, v18, s30, v14")
            k(f"v_fma_f32 v15, v19, s30, v15")
            k(f"v_fma_f32 v16, v18, s31, v16")
            k(f"v_fma_f32 v17, v19, s31, v17")
    k("v_lshlrev_b32 v20, 4, v0")
    k("ds_write_b128 v20, v[14:17]")
    k("s_waitcnt lgkmcnt(0)")
    k("s_barrier")
    k("s_cmp_lg_u32 s3, 0")
    k(f"s_cbranch_scc1 {L}")
    for w in range(1, 8):
        k(f"ds_read_b128 v[{20+4*w}:{23+4*w}], v20 offset:{1024*w}")
    k("s_waitcnt lgkmcnt(0)")
    for w in range(1, 8):
        for j in range(4):
            k(f"v_add_f32 v{14+j}, v{14+j}, v{20+4*w+j}")
    round_bf16_pair(k, 14, 15, 12)
    round_bf16_pair(k, 16, 17, 12)
    k("s_lshl_b32 s26, s2, 9")
    k("v_lshlrev_b32 v13, 3, v2")
    k("v_add_u32 v13, s26, v13")
    k("buffer_store_dwordx2 v[14:15], v13, s[20:23], 0 offen")
    k("v_add_u32 v13, 18432, v13")
    k("buffer_store_dwordx2 v[16:17], v13, s[20:23], 0 offen")
    k("s_waitcnt vmcnt(0)")
    k.label(L)
    return kernel_text(k, 64), "; @launch kernel=dit_mod_kernel grid=(36,1,1) block=(512,1,1) lds=8192"


def gen_ln(name, src_is_x, shift_idx, scale_idx, dst_off):
    k = K(name)
    L = k.newlab()
    k("s_cmp_ge_u32 s2, 512")
    k(f"s_cbranch_scc1 {L}")
    k(f"s_load_dwordx2 s[4:5], s[0:1], {KA_X}")
    k(f"s_load_dwordx2 s[8:9], s[0:1], {KA_WS}")
    k("v_lshrrev_b32 v1, 6, v0")
    k("v_and_b32 v2, 63, v0")
    k("s_nop 0")
    k("v_readfirstlane_b32 s3, v1")
    k("s_waitcnt lgkmcnt(0)")
    if src_is_x:
        srd(k, 12, 4, 5, 0, 2048 * 768 * 2)
    else:
        srd(k, 12, 8, 9, WS_X2, 2048 * 768 * 2)
    srd(k, 16, 8, 9, WS_MOD, 2 * 4608 * 4)
    srd(k, 20, 8, 9, dst_off, 2048 * 768 * 2)
    k("s_lshl_b32 s24, s2, 2")
    k("s_add_u32 s24, s24, s3")
    ln_row(k, shift_idx, scale_idx)
    k.label(L)
    return kernel_text(k, 72), f"; @launch kernel={name} grid=(512,1,1) block=(256,1,1) lds=0"


def gen_softmax():
    k = K("dit_softmax_kernel")
    L = k.newlab()
    k("s_cmp_ge_u32 s2, 1024")
    k(f"s_cbranch_scc1 {L}")
    k(f"s_load_dwordx2 s[8:9], s[0:1], {KA_WS}")
    k("v_lshrrev_b32 v1, 6, v0")
    k("v_and_b32 v2, 63, v0")
    k("s_nop 0")
    k("v_readfirstlane_b32 s3, v1")
    k("s_waitcnt lgkmcnt(0)")
    srd(k, 12, 8, 9, WS_S, 4096 * 1024 * 2)
    srd(k, 16, 8, 9, WS_P, 4096 * 1024 * 2)
    k("s_lshl_b32 s24, s2, 2")
    k("s_add_u32 s24, s24, s3")
    sm_row(k)
    k.label(L)
    return kernel_text(k, 72), "; @launch kernel=dit_softmax_kernel grid=(1024,1,1) block=(256,1,1) lds=0"


class Gemm:
    pass


def gen_gemm(name, BM, BN, K_, nbatch, tiles_m, tiles_n,
             a_src, a_off, a_bstride, lda, a_size,
             b_src, b_off, b_bstride, ldb, b_size, b_layout,
             o_src, o_off, o_bstride, ldo, o_size,
             epi, gate_idx=None, res_src=None, res_off=0, S=4, tail=None):
    k = K(name)
    WM, WN = BM // 2, BN // 2
    MT, NT = WM // 16, WN // 16
    nsteps = K_ // 64
    NA = BM // 32
    NB = BN // 32
    NL = NA + NB
    A_BYTES = BM * 128
    R = BN * 2
    B_BYTES = BN * 128
    STG = A_BYTES + B_BYTES
    assert S * STG <= 163840, S * STG
    nwg = nbatch * tiles_m * tiles_n
    L = k.newlab()
    k(f"s_cmp_ge_u32 s2, {nwg}")
    k(f"s_cbranch_scc1 {L}")
    k(f"s_load_dwordx2 s[4:5], s[0:1], {a_src}")
    k(f"s_load_dwordx2 s[6:7], s[0:1], {b_src}")
    k(f"s_load_dwordx2 s[8:9], s[0:1], {o_src}")
    k(f"s_load_dwordx2 s[10:11], s[0:1], {KA_WS}")
    if res_src is not None:
        k(f"s_load_dwordx2 s[40:41], s[0:1], {res_src}")
    def divmod_const(dst_q, dst_r, src, d):
        magic = (1 << 32) // d + 1
        k(f"s_mul_hi_u32 s{dst_q}, s{src}, {magic}")
        k(f"s_mul_i32 s{dst_r}, s{dst_q}, {d}")
        k(f"s_sub_u32 s{dst_r}, s{src}, s{dst_r}")
    k("s_and_b32 s54, s2, 7")
    k(f"s_mul_i32 s54, s54, {nwg//8}")
    k("s_lshr_b32 s55, s2, 3")
    k("s_add_u32 s54, s54, s55")
    divmod_const(30, 31, 54, tiles_n)
    divmod_const(32, 33, 30, tiles_m)
    k("v_lshrrev_b32 v1, 6, v0")
    k("v_and_b32 v2, 63, v0")
    k("s_nop 0")
    k("v_readfirstlane_b32 s3, v1")
    k("v_and_b32 v1, 3, v1")
    k("s_lshr_b32 s53, s3, 2")
    k("s_and_b32 s3, s3, 3")
    k("s_waitcnt lgkmcnt(0)")
    k(f"s_mul_i32 s34, s32, {a_bstride}")
    k(f"s_add_u32 s34, s34, {a_off}")
    srd_s(k, 12, 4, 5, 34, a_size)
    k(f"s_mul_i32 s34, s32, {b_bstride}")
    k(f"s_add_u32 s34, s34, {b_off}")
    srd_s(k, 16, 6, 7, 34, b_size)
    k(f"s_mul_i32 s34, s32, {o_bstride}")
    k(f"s_add_u32 s34, s34, {o_off}")
    srd_s(k, 20, 8, 9, 34, o_size)
    srd(k, 24, 10, 11, WS_MOD, 2 * 4608 * 4)
    if res_src is not None:
        srd(k, 44, 40, 41, res_off, 2048 * 768 * 2)
    vAg = 4
    vBg = list(range(5, 5 + NB))
    vAr = [11, 12]
    vBr = list(range(13, 13 + max(NT, 2)))
    vAc = [19, 20]
    vBc = list(range(21, 21 + max(NT, 2)))
    vT = [27, 28, 29, 30, 31, 32, 33]
    ep = 34
    frA = 72
    frB = frA + 2 * MT * 4
    acc = frB + 2 * NT * 4
    nv = acc + MT * NT * 4
    assert nv <= 256, nv
    t0, t1, t2, t3 = vT[0], vT[1], vT[2], vT[3]
    def fk(dst, kreg, tmp):
        k(f"v_bfe_u32 v{tmp}, v{kreg}, 3, 1")
        if (BN // 16) % 4 == 0:
            k(f"v_bfe_u32 v{dst}, v{kreg}, 1, 1")
            k(f"v_lshl_or_b32 v{dst}, v{tmp}, 1, v{dst}")
        else:
            k(f"v_mov_b32 v{dst}, v{tmp}")
    k(f"v_lshrrev_b32 v{t0}, 3, v2")
    k(f"v_and_b32 v{t1}, 7, v2")
    k(f"v_xor_b32 v{t1}, v{t1}, v{t0}")
    k(f"s_mul_i32 s35, s33, {BM}")
    k(f"s_lshl_b32 s36, s3, 3")
    k(f"s_add_u32 s35, s35, s36")
    k(f"v_add_u32 v{t2}, s35, v{t0}")
    k(f"s_mov_b32 s36, {lda*2}")
    k(f"v_mul_lo_u32 v{t2}, v{t2}, s36")
    k(f"v_lshl_add_u32 v{vAg}, v{t1}, 4, v{t2}")
    if b_layout == "NT":
        k(f"s_mul_i32 s35, s31, {BN}")
        k(f"s_lshl_b32 s36, s3, 3")
        k(f"s_add_u32 s35, s35, s36")
        k(f"v_add_u32 v{t2}, s35, v{t0}")
        k(f"s_mov_b32 s36, {ldb*2}")
        k(f"v_mul_lo_u32 v{t2}, v{t2}, s36")
        k(f"v_lshl_add_u32 v{vBg[0]}, v{t1}, 4, v{t2}")
    else:
        CPR = R // 16
        magic = (1 << 32) // CPR + 1
        k(f"s_mov_b32 s36, {magic}")
        k(f"s_mul_i32 s35, s31, {BN*2}")
        k(f"s_mov_b32 s37, {ldb*2}")
        for i in range(NB):
            k(f"s_lshl_b32 s43, s3, 6")
            k(f"v_add_u32 v{t2}, s43, v2")
            k(f"v_add_u32 v{t2}, {256*i}, v{t2}")
            k(f"v_mul_hi_u32 v{t3}, v{t2}, s36")
            k(f"v_mul_u32_u24 v{vT[4]}, {CPR}, v{t3}")
            k(f"v_sub_u32 v{vT[4]}, v{t2}, v{vT[4]}")
            fk(vT[5], t3, vT[6])
            k(f"v_lshrrev_b32 v{vT[6]}, 1, v{vT[4]}")
            k(f"v_xor_b32 v{vT[6]}, v{vT[6]}, v{vT[5]}")
            k(f"v_and_b32 v{vT[4]}, 1, v{vT[4]}")
            k(f"v_lshl_or_b32 v{vT[4]}, v{vT[6]}, 1, v{vT[4]}")
            k(f"v_mul_lo_u32 v{vT[5]}, v{t3}, s37")
            k(f"v_lshl_add_u32 v{vT[5]}, v{vT[4]}, 4, v{vT[5]}")
            k(f"v_add_u32 v{vBg[i]}, s35, v{vT[5]}")
    k("v_lshrrev_b32 v{0}, 1, v1".format(t0))
    k("v_and_b32 v{0}, 1, v1".format(t1))
    k(f"v_and_b32 v{t2}, 15, v2")
    k(f"v_lshrrev_b32 v{t3}, 4, v2")
    k(f"v_mul_u32_u24 v{vT[4]}, {WM}, v{t0}")
    k(f"v_add_u32 v{vT[4]}, v{vT[4]}, v{t2}")
    k(f"v_and_b32 v{vT[5]}, 7, v2")
    k(f"v_xor_b32 v{vT[5]}, v{vT[5]}, v{t3}")
    k(f"v_lshlrev_b32 v{vT[5]}, 4, v{vT[5]}")
    k(f"v_lshl_add_u32 v{vAr[0]}, v{vT[4]}, 7, v{vT[5]}")
    k(f"v_xor_b32 v{vAr[1]}, 64, v{vAr[0]}")
    if b_layout == "NT":
        k(f"v_mul_u32_u24 v{vT[4]}, {WN}, v{t1}")
        k(f"v_add_u32 v{vT[4]}, v{vT[4]}, v{t2}")
        k(f"v_lshl_add_u32 v{vBr[0]}, v{vT[4]}, 7, v{vT[5]}")
        k(f"v_add_u32 v{vBr[0]}, {A_BYTES}, v{vBr[0]}")
        k(f"v_xor_b32 v{vBr[1]}, 64, v{vBr[0]}")
        nBr = 2
    else:
        k(f"v_lshrrev_b32 v{vT[4]}, 2, v{t2}")
        k(f"v_lshl_add_u32 v{vT[4]}, v{t3}, 3, v{vT[4]}")
        fk(vT[5], vT[4], vT[6])
        k(f"v_mul_u32_u24 v{vT[4]}, {R}, v{vT[4]}")
        k(f"v_and_b32 v{vT[6]}, 3, v2")
        k(f"v_lshl_add_u32 v{vT[4]}, v{vT[6]}, 3, v{vT[4]}")
        k(f"v_add_u32 v{vT[4]}, {A_BYTES}, v{vT[4]}")
        for j in range(NT):
            k(f"v_mul_u32_u24 v{vT[6]}, {NT}, v{t1}")
            k(f"v_add_u32 v{vT[6]}, {j}, v{vT[6]}")
            k(f"v_xor_b32 v{vT[6]}, v{vT[6]}, v{vT[5]}")
            k(f"v_lshl_add_u32 v{vBr[j]}, v{vT[6]}, 5, v{vT[4]}")
        nBr = NT
    for i in range(MT * NT * 4):
        k(f"v_mov_b32 v{acc+i}, 0")
    k("s_mov_b32 s38, 0")
    k("s_mov_b32 s39, 0")
    k("s_lshl_b32 s48, s3, 10")
    k("s_mov_b32 s49, s48")
    k("s_mov_b32 s50, 0")
    bstep = 64 * ldb * 2 if b_layout == "NN" else 128

    def dma():
        for i in range(NA):
            k(f"s_add_u32 m0, s49, {4096*i}")
            k(f"s_add_u32 s51, s38, {32*i*lda*2}")
            k(f"buffer_load_dwordx4 v{vAg}, s[12:15], s51 offen lds")
        for i in range(NB):
            k(f"s_add_u32 m0, s49, {A_BYTES + 4096*i}")
            if b_layout == "NT":
                k(f"s_add_u32 s51, s39, {32*i*ldb*2}")
                k(f"buffer_load_dwordx4 v{vBg[0]}, s[16:19], s51 offen lds")
            else:
                k("s_nop 0")
                k(f"buffer_load_dwordx4 v{vBg[i]}, s[16:19], s39 offen lds")
        k("s_add_u32 s38, s38, 128")
        k(f"s_add_u32 s39, s39, {bstep}")
        k(f"s_add_u32 s49, s49, {STG}")
        k(f"s_sub_u32 s51, s49, s48")
        k(f"s_cmp_ge_u32 s51, {S*STG}")
        k(f"s_cselect_b32 s49, s48, s49")

    def compute():
        for i in range(2):
            k(f"v_add_u32 v{vAc[i]}, s50, v{vAr[i]}")
        for j in range(nBr):
            k(f"v_add_u32 v{vBc[j]}, s50, v{vBr[j]}")
        cnt = []
        for kk in range(2):
            n = 0
            for i in range(MT):
                r = frA + (kk * MT + i) * 4
                k(f"ds_read_b128 v[{r}:{r+3}], v{vAc[kk]} offset:{2048*i}")
                n += 1
            for j in range(NT):
                r = frB + (kk * NT + j) * 4
                if b_layout == "NT":
                    k(f"ds_read_b128 v[{r}:{r+3}], v{vBc[kk]} offset:{2048*j}")
                    n += 1
                else:
                    o = kk * 32 * R
                    k(f"ds_read_b64_tr_b16 v[{r}:{r+1}], v{vBc[j]} offset:{o}")
                    k(f"ds_read_b64_tr_b16 v[{r+2}:{r+3}], v{vBc[j]} offset:{o+4*R}")
                    n += 2
            cnt.append(n)
        for kk in range(2):
            k(f"s_waitcnt lgkmcnt({min(cnt[1],15) if kk == 0 else 0})")
            for i in range(MT):
                for j in range(NT):
                    a = frA + (kk * MT + i) * 4
                    b = frB + (kk * NT + j) * 4
                    c = acc + (i * NT + j) * 4
                    k(f"v_mfma_f32_16x16x32_bf16 v[{c}:{c+3}], v[{b}:{b+3}], v[{a}:{a+3}], v[{c}:{c+3}]")
        k(f"s_add_u32 s50, s50, {STG}")
        k(f"s_cmp_ge_u32 s50, {S*STG}")
        k(f"s_cselect_b32 s50, 0, s50")

    nmain = nsteps - (S - 1)
    assert nmain >= 1
    k(f"s_mov_b32 s42, {nmain}")
    Lc = k.newlab()
    k("s_cmp_eq_u32 s53, 0")
    k(f"s_cbranch_scc1 {Lc}")
    for s in range(S - 1):
        dma()
    Lp = k.newlab()
    k.label(Lp)
    k(f"s_waitcnt vmcnt({(S-2)*NL})")
    k("s_barrier")
    dma()
    k("s_sub_u32 s42, s42, 1")
    k("s_cmp_lg_u32 s42, 0")
    k(f"s_cbranch_scc1 {Lp}")
    for tl in range(S - 1):
        k(f"s_waitcnt vmcnt({(S-2-tl)*NL})")
        k("s_barrier")
    k("s_barrier")
    k(f"s_branch {L}")
    k.label(Lc)
    k(f"s_mov_b32 s42, {nsteps}")
    Lq = k.newlab()
    k.label(Lq)
    k("s_barrier")
    compute()
    k("s_sub_u32 s42, s42, 1")
    k("s_cmp_lg_u32 s42, 0")
    k(f"s_cbranch_scc1 {Lq}")
    vO = vT[4]
    k(f"s_mul_i32 s35, s33, {BM}")
    k(f"v_mul_u32_u24 v{vT[5]}, {WM}, v{t0}")
    k(f"v_add3_u32 v{vT[5]}, v{vT[5]}, v{t2}, s35")
    k(f"s_mul_i32 s36, s31, {BN}")
    k(f"v_mul_u32_u24 v{vT[6]}, {WN}, v{t1}")
    k(f"v_lshl_add_u32 v{vT[6]}, v{t3}, 2, v{vT[6]}")
    k(f"v_add_u32 v{vT[6]}, s36, v{vT[6]}")
    k(f"s_mov_b32 s37, {ldo*2}")
    k(f"v_mul_lo_u32 v{vO}, v{vT[5]}, s37")
    k(f"v_lshl_add_u32 v{vO}, v{vT[6]}, 1, v{vO}")
    e0 = ep
    ORS = WN * 2 + 16
    vLw = 35 + 36
    k("s_barrier")
    k(f"s_mul_i32 s52, s3, {WM*ORS}")
    k(f"v_mul_u32_u24 v{vLw}, {ORS}, v{t2}")
    k(f"v_lshl_add_u32 v{vLw}, v{t3}, 3, v{vLw}")
    k(f"v_add_u32 v{vLw}, s52, v{vLw}")
    if epi == "gateres":
        k(f"s_lshr_b32 s37, s35, 10")
        k(f"s_mul_i32 s37, s37, 18432")
        k(f"s_add_u32 s37, s37, {gate_idx*3072}")
        k(f"v_lshlrev_b32 v{vT[6]}, 2, v{vT[6]}")
        for j in range(NT):
            k(f"buffer_load_dwordx4 v[{e0+4*j}:{e0+4*j+3}], v{vT[6]}, s[24:27], s37 offen offset:{64*j}")
    k("s_nop 7")
    k("s_nop 7")
    g0 = e0
    r0 = e0 + 4 * NT
    for i in range(MT):
        if epi == "gateres":
            for j in range(NT):
                k(f"buffer_load_dwordx2 v[{r0+2*j}:{r0+2*j+1}], v{vO}, s[44:47], 0 offen offset:{32*j}")
            k("s_waitcnt vmcnt(0)")
        for j in range(NT):
            c = acc + (i * NT + j) * 4
            if epi == "plain":
                pass
            elif epi == "sscale":
                round_bf16_pair(k, c, c + 1, vT[5])
                round_bf16_pair(k, c + 2, c + 3, vT[5])
                for q in range(4):
                    k(f"v_mul_f32 v{c+q}, 0x3d5105ec, v{c+q}")
            elif epi == "gelu":
                round_bf16_pair(k, c, c + 1, vT[5])
                round_bf16_pair(k, c + 2, c + 3, vT[5])
                for q in range(4):
                    x = c + q
                    tt = r0 + q
                    k(f"v_mul_f32 v{tt}, v{x}, v{x}")
                    k(f"v_mul_f32 v{tt}, 0x3d372713, v{tt}")
                    k(f"v_add_f32 v{tt}, 1.0, v{tt}")
                    k(f"v_mul_f32 v{tt}, v{tt}, v{x}")
                    k(f"v_mul_f32 v{tt}, 0xc0135761, v{tt}")
                for q in range(4):
                    k(f"v_exp_f32 v{r0+q}, v{r0+q}")
                k("s_nop 0")
                for q in range(4):
                    k(f"v_add_f32 v{r0+q}, 1.0, v{r0+q}")
                for q in range(4):
                    k(f"v_rcp_f32 v{r0+q}, v{r0+q}")
                k("s_nop 0")
                for q in range(4):
                    k(f"v_mul_f32 v{c+q}, v{c+q}, v{r0+q}")
            elif epi == "gateres":
                round_bf16_pair(k, c, c + 1, vT[5])
                round_bf16_pair(k, c + 2, c + 3, vT[5])
                for q in range(4):
                    k(f"v_mul_f32 v{c+q}, v{c+q}, v{g0+4*j+q}")
                round_bf16_pair(k, c, c + 1, vT[5])
                round_bf16_pair(k, c + 2, c + 3, vT[5])
                ra = r0 + 2 * j
                k(f"v_lshlrev_b32 v{vT[5]}, 16, v{ra}")
                k(f"v_add_f32 v{c}, v{c}, v{vT[5]}")
                k(f"v_and_b32 v{vT[5]}, 0xffff0000, v{ra}")
                k(f"v_add_f32 v{c+1}, v{c+1}, v{vT[5]}")
                k(f"v_lshlrev_b32 v{vT[5]}, 16, v{ra+1}")
                k(f"v_add_f32 v{c+2}, v{c+2}, v{vT[5]}")
                k(f"v_and_b32 v{vT[5]}, 0xffff0000, v{ra+1}")
                k(f"v_add_f32 v{c+3}, v{c+3}, v{vT[5]}")
            k(f"v_cvt_pk_bf16_f32 v{c}, v{c}, v{c+1}")
            k(f"v_cvt_pk_bf16_f32 v{c+1}, v{c+2}, v{c+3}")
            k(f"ds_write_b64 v{vLw}, v[{c}:{c+1}] offset:{16*i*ORS + 32*j}")
        if i + 1 < MT and epi == "gateres":
            k(f"v_add_u32 v{vO}, {16*ldo*2}, v{vO}")
    k("s_waitcnt lgkmcnt(0)")
    CW = WN * 2 // 16
    nit = WM * CW // 64
    magic = (1 << 32) // CW + 1
    k(f"s_mov_b32 s36, {magic}")
    k(f"s_mul_i32 s35, s33, {BM}")
    k(f"s_lshr_b32 s37, s3, 1")
    k(f"s_mul_i32 s37, s37, {WM}")
    k(f"s_add_u32 s35, s35, s37")
    k(f"s_mul_i32 s35, s35, {ldo*2}")
    k(f"s_mul_i32 s37, s31, {BN*2}")
    k(f"s_add_u32 s35, s35, s37")
    k(f"s_and_b32 s37, s3, 1")
    k(f"s_mul_i32 s37, s37, {WN*2}")
    k(f"s_add_u32 s35, s35, s37")
    k(f"s_mov_b32 s37, {ldo*2}")
    for it in range(nit):
        q, rr, cc, la, ga = vT[0], vT[1], vT[2], vT[3], vT[5]
        k(f"v_add_u32 v{q}, {64*it}, v2")
        k(f"v_mul_hi_u32 v{rr}, v{q}, s36")
        k(f"v_mul_u32_u24 v{cc}, {CW}, v{rr}")
        k(f"v_sub_u32 v{cc}, v{q}, v{cc}")
        k(f"v_mul_u32_u24 v{la}, {ORS}, v{rr}")
        k(f"v_lshl_add_u32 v{la}, v{cc}, 4, v{la}")
        k(f"v_add_u32 v{la}, s52, v{la}")
        d = acc + 4 * (it % 8)
        k(f"ds_read_b128 v[{d}:{d+3}], v{la}")
        k(f"v_mul_lo_u32 v{ga}, v{rr}, s37")
        k(f"v_lshl_add_u32 v{ep+(it%8)}, v{cc}, 4, v{ga}")
        k("s_waitcnt lgkmcnt(0)")
        k(f"buffer_store_dwordx4 v[{d}:{d+3}], v{ep+(it%8)}, s[20:23], s35 offen")
    k("s_waitcnt vmcnt(0)")
    if tail is not None:
        k("s_barrier")
        k(f"s_load_dwordx2 s[56:57], s[0:1], {KA_DBG}")
        k("s_waitcnt lgkmcnt(0)")
        srd(k, 60, 56, 57, 0, 256)
        Lw = k.newlab()
        k("s_cmp_lg_u32 s3, 0")
        k(f"s_cbranch_scc1 {Lw}")
        k("buffer_wbl2 sc1")
        k("s_waitcnt vmcnt(0)")
        k("v_mov_b32 v4, 1")
        k("s_lshl_b32 s35, s30, 2")
        k("v_mov_b32 v5, s35")
        k("v_mov_b32 v6, 0")
        k("s_mov_b64 s[58:59], exec")
        k("s_mov_b64 exec, 1")
        k("buffer_atomic_add v4, v5, s[60:63], 0 offen sc0")
        k("s_waitcnt vmcnt(0)")
        k("ds_write_b32 v6, v4")
        k("s_waitcnt lgkmcnt(0)")
        k("s_mov_b64 exec, s[58:59]")
        k.label(Lw)
        k("s_barrier")
        k("v_mov_b32 v6, 0")
        k("ds_read_b32 v4, v6")
        k("s_waitcnt lgkmcnt(0)")
        k("v_readfirstlane_b32 s35, v4")
        k(f"s_cmp_lg_u32 s35, {tiles_n-1}")
        k(f"s_cbranch_scc1 {L}")
        k("buffer_inv sc1")
        k("s_waitcnt vmcnt(0)")
        rows = BM // 4
        k(f"s_mul_i32 s64, s30, {BM}")
        k(f"s_mul_i32 s65, s3, {rows}")
        k("s_add_u32 s64, s64, s65")
        k(f"s_mov_b32 s65, {rows}")
        if tail == "ln2":
            srd(k, 12, 10, 11, WS_X2, 2048 * 768 * 2)
            srd(k, 16, 10, 11, WS_MOD, 2 * 4608 * 4)
            srd(k, 20, 10, 11, WS_H2, 2048 * 768 * 2)
        else:
            srd(k, 12, 10, 11, WS_S, 4096 * 1024 * 2)
            srd(k, 16, 10, 11, WS_P, 4096 * 1024 * 2)
        Lt = k.newlab()
        k.label(Lt)
        k("s_mov_b32 s24, s64")
        if tail == "ln2":
            ln_row(k, 3, 4)
        else:
            sm_row(k)
        k("s_add_u32 s64, s64, 1")
        k("s_sub_u32 s65, s65, 1")
        k("s_cmp_lg_u32 s65, 0")
        k(f"s_cbranch_scc1 {Lt}")
    k.label(L)
    return kernel_text(k, nv), f"; @launch kernel={name} grid=({nwg},1,1) block=(512,1,1) lds={S*STG}"


def main():
    parts = []
    parts.append(gen_mod())
    parts.append(gen_ln("dit_ln1_kernel", True, 0, 1, WS_H))
    parts.append(gen_gemm("dit_qkv_kernel", 128, 192, 768, 1, 16, 12,
                          KA_WS, WS_H, 0, 768, 2048 * 768 * 2,
                          KA_WQKV, 0, 0, 2304, 768 * 2304 * 2, "NN",
                          KA_WS, WS_QKV, 0, 2304, 2048 * 2304 * 2, "plain"))
    parts.append(gen_gemm_bh("dit_s_kernel", "S"))
    parts.append(gen_gemm_bh("dit_pv_kernel", "PV"))
    parts.append(gen_gemm("dit_wo_kernel", 64, 96, 768, 1, 32, 8,
                          KA_WS, WS_AO, 0, 768, 2048 * 768 * 2,
                          KA_WO, 0, 0, 768, 768 * 768 * 2, "NN",
                          KA_WS, WS_X2, 0, 768, 2048 * 768 * 2, "gateres", gate_idx=2, res_src=KA_X, res_off=0, S=7, tail="ln2"))
    parts.append(gen_gemm("dit_fc1_kernel", 128, 192, 768, 1, 16, 16,
                          KA_WS, WS_H2, 0, 768, 2048 * 768 * 2,
                          KA_FC1, 0, 0, 3072, 768 * 3072 * 2, "NN",
                          KA_WS, WS_G, 0, 3072, 2048 * 3072 * 2, "gelu"))
    parts.append(gen_gemm("dit_fc2_kernel", 64, 96, 3072, 1, 32, 8,
                          KA_WS, WS_G, 0, 3072, 2048 * 3072 * 2,
                          KA_FC2, 0, 0, 768, 3072 * 768 * 2, "NN",
                          KA_OUT, 0, 0, 768, 2048 * 768 * 2, "gateres", gate_idx=5, res_src=KA_WS, res_off=WS_X2, S=7))
    hdr = open("standalone__dit_block__diffusion.s.ref").read().split("; Override launch")[0]
    out = hdr
    for _, l in parts:
        out += l + "\n"
    out += '.amdgcn_target "amdgcn-amd-amdhsa--gfx950"\n'
    for t, _ in parts:
        out += t
    open(sys.argv[1] if len(sys.argv) > 1 else "standalone__dit_block__diffusion.s", "w").write(out)


def gen_gemm_bh(name, kind):
    if kind == "S":
        return gen_gemm_bh_impl(name, 128, 128, 384, 8, 8,
                                a=(WS_QKV, 2304), b=(WS_QKV + 768 * 2, 2304), layout="NT",
                                o=(WS_S, 1024 * 1024 * 2, 1024), epi="sscale", a_is_qkv=True)
    else:
        return gen_gemm_bh_impl(name, 64, 96, 1024, 16, 4,
                                a=(WS_P, 1024), b=(WS_QKV + 1536 * 2, 2304), layout="NN",
                                o=(WS_AO, None, 768), epi="plain", a_is_qkv=False)


def gen_gemm_bh_impl(name, BM, BN, K_, tiles_m, tiles_n, a, b, layout, o, epi, a_is_qkv):
    text, launch = gen_gemm(name, BM, BN, K_, 4, tiles_m, tiles_n,
                            KA_WS, a[0], 111111 if a_is_qkv else 1024 * 1024 * 2, a[1],
                            (2048 * 2304 * 2) if a_is_qkv else 4096 * 1024 * 2,
                            KA_WS, b[0], 111111, b[1], 2048 * 2304 * 2, layout,
                            KA_WS, o[0], o[1] if o[1] is not None else 222222, o[2],
                            4096 * 1024 * 2 if o[1] is not None else 2048 * 768 * 2, epi, S=(4 if a_is_qkv else 7), tail=('sm' if a_is_qkv else None))
    qkv_off = ("    s_lshr_b32 s34, s32, 1\n    s_mul_i32 s34, s34, 4718592\n"
               "    s_and_b32 s43, s32, 1\n    s_mul_i32 s43, s43, 768\n    s_add_u32 s34, s34, s43\n")
    text = text.replace("    s_mul_i32 s34, s32, 111111\n", qkv_off)
    ao_off = ("    s_lshr_b32 s34, s32, 1\n    s_mul_i32 s34, s34, 1572864\n"
              "    s_and_b32 s43, s32, 1\n    s_mul_i32 s43, s43, 768\n    s_add_u32 s34, s34, s43\n")
    text = text.replace("    s_mul_i32 s34, s32, 222222\n", ao_off)
    return text, launch


if __name__ == "__main__":
    main()
```
